```python
import torch

def _softmax(x, axis=-1):
    return torch.softmax(x, dim=axis)
def _gelu(x):
    return torch.nn.functional.gelu(x, approximate="tanh")
def _silu(x):
    return torch.nn.functional.silu(x)
def _sigmoid(x):
    return torch.sigmoid(x)
def _layernorm(x, axis=-1, eps=1e-5):
    m = x.mean(dim=axis, keepdim=True)
    v = x.var(dim=axis, keepdim=True, unbiased=False)
    return (x - m) / torch.sqrt(v + eps)
def _scatter_add(tgt, idx, src, axis=0):
    return tgt.clone().index_add_(axis, idx, src)
def _segment_sum(src, seg, n):
    out = torch.zeros((n,) + src.shape[1:], dtype=src.dtype)
    return out.index_add_(0, seg, src)
def _pad(x, pw):
    flat = tuple(v for pair in reversed(pw) for v in pair)
    return torch.nn.functional.pad(x, flat)

kernel_name = 'sequential_preLN__grouped_kv_mqa__glu_gated_geglu__prompt'

def setup_inputs():

    _w = (lambda a: (lambda t: t.to(torch.bfloat16) if t.is_floating_point() else t)(torch.as_tensor(a)))
    def _A_setup():
        B, S, D, H = 1, 2048, 576, 32
        Dh = D // H
        return {
            "x": _w((lambda *s: torch.randn(*s, dtype=torch.bfloat16) * 0.05)(B, S, D)),
            "wq": _w((lambda *s: torch.randn(*s, dtype=torch.bfloat16) * 0.05)(D, H * Dh)),
            "wk": _w((lambda *s: torch.randn(*s, dtype=torch.bfloat16) * 0.05)(D, Dh)),
            "wv": _w((lambda *s: torch.randn(*s, dtype=torch.bfloat16) * 0.05)(D, Dh)),
            "wo": _w((lambda *s: torch.randn(*s, dtype=torch.bfloat16) * 0.05)(H * Dh, D)),
        }
    _A_in = _A_setup()

    def _B_setup():
        B, S, Dm, Df = 1, 2048, 576, 4608
        return {
            "x": _w((lambda *s: torch.randn(*s, dtype=torch.bfloat16) * 0.05)(B, S, Dm)),
            "w_gate": _w((lambda *s: torch.randn(*s, dtype=torch.bfloat16) * 0.8)(Dm, Df) * (Dm ** -0.5)),
            "w_up": _w((lambda *s: torch.randn(*s, dtype=torch.bfloat16) * 0.8)(Dm, Df) * (Dm ** -0.5)),
            "w_down": _w((lambda *s: torch.randn(*s, dtype=torch.bfloat16) * 0.8)(Df, Dm) * (Df ** -0.5)),
        }
    _B_in = _B_setup()

    return {
        "A_x": _A_in["x"],
        "A_wq": _A_in["wq"],
        "A_wk": _A_in["wk"],
        "A_wv": _A_in["wv"],
        "A_wo": _A_in["wo"],
        "B_x": _B_in["x"],
        "B_w_gate": _B_in["w_gate"],
        "B_w_up": _B_in["w_up"],
        "B_w_down": _B_in["w_down"],
    }

def reference(A_x, A_wq, A_wk, A_wv, A_wo, B_x, B_w_gate, B_w_up, B_w_down):
    def _A_ref(x, wq, wk, wv, wo):
        B, S, D = x.shape
        H = 32
        Dh = D // H
        q = (lambda x, *d: x.permute(*d))((x @ wq).reshape(B, S, H, Dh), 0, 2, 1, 3)
        k = x @ wk
        v = x @ wv
        scores = torch.einsum("bhqd,bkd->bhqk", q, k) * (Dh ** -0.5)
        p = _softmax(scores, axis=-1)
        o = torch.einsum("bhqk,bkd->bhqd", p, v)
        return (lambda x, *d: x.permute(*d))(o, 0, 2, 1, 3).reshape(B, S, H * Dh) @ wo

    def _B_ref(x, w_gate, w_up, w_down):
        g = torch.einsum("bsd,df->bsf", x, w_gate)
        u = torch.einsum("bsd,df->bsf", x, w_up)
        h = _gelu(g) * u
        return torch.einsum("bsf,fd->bsd", h, w_down)

    x = A_x
    h = x + _A_ref(_layernorm(x, axis=-1), A_wq, A_wk, A_wv, A_wo)
    h2 = h + _B_ref(_layernorm(h, axis=-1), B_w_gate, B_w_up, B_w_down)
    return h2
```

```python
import re

REG = re.compile(r'^(-?)(abs\()?([vas])(\d+|\[(\d+):(\d+)\])\)?$')
TRANS = ('v_exp_f32', 'v_log_f32', 'v_rcp_f32', 'v_rsq_f32', 'v_sqrt_f32', 'v_sin_f32', 'v_cos_f32', 'v_rcp_iflag_f32')

def regs(tok):
    tok = tok.strip()
    if tok == 'vcc': return {('s', 'vcc')}
    if tok == 'exec': return {('s', 'exec')}
    if tok == 'm0': return {('s', 'm0')}
    m = REG.match(tok)
    if not m: return set()
    f = m.group(3)
    if m.group(5) is not None: return {(f, i) for i in range(int(m.group(5)), int(m.group(6)) + 1)}
    return {(f, int(m.group(4)))}

def passes(op):
    if '32x32x4' in op: return 16
    if '32x32' in op: return 8
    if '16x16' in op: return 4
    raise ValueError(op)

class I:
    def __init__(s, text):
        s.text = text
        t = text.split(';')[0].strip()
        p = t.split(None, 1)
        s.op = p[0]
        rest = p[1] if len(p) > 1 else ''
        ops = [x.strip() for x in re.split(r',(?![^\[]*\])', rest)] if rest else []
        s.mods = ''
        if ops:
            q = ops[-1].split(None, 1)
            ops[-1] = q[0]
            s.mods = q[1] if len(q) > 1 else ''
        s.ops = ops
        R = [regs(o) for o in ops]
        op = s.op
        s.kind = 'other'; s.w = set(); s.r = set(); s.states = 1
        s.srcC = set(); s.srcAB = set(); s.lds_dma = False; s.wide = set()
        U = lambda l: set().union(*l) if l else set()
        if op.startswith(('v_mfma', 'v_smfmac')):
            s.kind = 'mfma'; s.p = passes(op); s.w = R[0]
            if op.startswith('v_smfmac'): s.srcC = R[0]; s.srcAB = R[1] | R[2] | R[3]
            else: s.srcC = R[3]; s.srcAB = R[1] | R[2]
            s.r = s.srcC | s.srcAB
        elif op.startswith('v_'):
            s.kind = 'valu'
            if op.startswith('v_permlane') or op.startswith('v_swap'): s.w = R[0] | R[1]; s.r = set(s.w)
            elif '_co_' in op or op.startswith('v_mad_u64'): s.w = R[0] | R[1]; s.r = U(R[2:])
            elif op == 'v_nop': pass
            else:
                s.w = R[0]; s.r = U(R[1:])
                if op.startswith(('v_fmac', 'v_dot2c', 'v_writelane')) or 'dpp' in op or 'PRESERVE' in s.mods: s.r |= R[0]
        elif op.startswith(('buffer_', 'global_')):
            s.kind = 'vmem'
            if op in ('buffer_wbl2', 'buffer_inv'): pass
            elif 'lds' in op or re.search(r'\blds\b', s.mods): s.lds_dma = True; s.r = U(R) | {('s', 'm0')}
            elif '_load' in op:
                s.w = R[0]; s.r = U(R[1:])
                if 'd16' in op: s.r |= R[0]
            else:
                s.r = U(R)
                if 'atomic' in op and 'sc0' in s.mods:
                    s.w = R[0]
                if op.endswith(('x3', 'x4')): s.wide = R[0] if op.startswith('buffer') else R[1]
        elif op.startswith('ds_'):
            s.kind = 'ds'
            if op.startswith(('ds_read', 'ds_bpermute', 'ds_permute', 'ds_swizzle')) or '_rtn' in op: s.w = R[0]; s.r = U(R[1:])
            else: s.r = U(R)
        elif op.startswith('s_'):
            s.kind = 'salu'
            if op == 's_nop': s.states = int(ops[0]) + 1
            elif op.startswith(('s_load', 's_memtime', 's_memrealtime', 's_buffer_load')): s.kind = 'smem'; s.w = R[0]; s.r = U(R[1:])
            elif op.startswith(('s_cmp', 's_cbranch', 's_branch', 's_waitcnt', 's_barrier', 's_endpgm', 's_setprio', 's_sleep', 's_bitcmp')): s.r = U(R)
            else:
                s.w = R[0]; s.r = U(R[1:])
                if 'saveexec' in op: s.w = s.w | {('s', 'exec')}
        s.trans = op.replace('_e32', '').replace('_e64', '') in TRANS
        s.dot = op.startswith('v_dot')
        s.dpp = 'dpp' in op or 'row_' in s.mods or 'quad_perm' in s.mods

def need(p, c):
    n = 0
    isv = lambda S: {x for x in S if x[0] in 'va'}
    iss = lambda S: {x for x in S if x[0] == 's'}
    if p.kind == 'valu':
        wv = isv(p.w); ws = iss(p.w)
        if c.kind == 'mfma' and wv & c.r: n = max(n, 3 if p.dot else 2)
        if c.kind == 'valu':
            if wv & c.r:
                if c.dpp or c.op.startswith('v_permlane'): n = max(n, 2)
                if c.op.startswith(('v_readlane', 'v_readfirstlane')): n = max(n, 1)
                if p.trans and not c.trans: n = max(n, 1)
                if 'sdwa' in p.op or 'op_sel' in p.mods: n = max(n, 1)
            if p.dot and wv & (c.r | c.w):
                same_c = c.op == p.op and not (wv & set().union(*[regs(o) for o in c.ops[1:3]]))
                if not same_c: n = max(n, 3)
            if ws & c.r: n = max(n, 4 if c.op.startswith(('v_readlane', 'v_writelane')) else 2)
        if c.kind in ('vmem', 'ds') and p.dot and wv & c.r: n = max(n, 3)
        if c.kind in ('vmem', 'ds') and p.trans and wv & c.r: n = max(n, 1)
        if c.kind == 'vmem' and ws & c.r: n = max(n, 5)
        if c.kind in ('salu', 'smem') and ws & c.r: n = max(n, 1)
    elif p.kind == 'mfma':
        far = p.p + 4
        if c.kind == 'mfma':
            if p.w & c.srcAB: n = max(n, far)
            if p.w & c.srcC:
                if not (p.w == c.srcC and p.p == c.p): n = max(n, p.p + 2)
        elif c.kind == 'valu':
            if p.w & (c.r | c.w): n = max(n, far)
            if p.srcC & c.w: n = max(n, p.p - 1)
        elif c.kind in ('vmem', 'ds'):
            if p.w & (c.r | c.w): n = max(n, far)
    elif p.kind == 'salu':
        if ('s', 'm0') in p.w and c.lds_dma: n = max(n, 1)
    elif p.kind == 'vmem':
        if p.wide & c.w: n = max(n, 2 if c.kind == 'valu' else 1)
    return n

class Asm:
    def __init__(s, verbose=False):
        s.out = []; s.hist = []
        s.vm = []; s.lg = []
        s.n = 0; s.nops = 0; s.autowaits = 0; s.log = []; s.smem_pending = False
        s.tag = ''
    def raw(s, text): s.out.append(text)
    def label(s, name):
        s.out.append(name + ':')
    def comment(s, t): s.out.append('; ' + t)
    def _push(s, ins):
        s.out.append('    ' + ins.text); s.hist.append(ins)
        if len(s.hist) > 24: s.hist.pop(0)
    def _wait(s, vm=None, lg=None, auto=False):
        parts = []
        if vm is not None and vm < len(s.vm):
            assert vm <= 63
            parts.append(f'vmcnt({vm})'); s.vm = s.vm[len(s.vm) - vm:] if vm else []
        if lg is not None and (lg < len(s.lg) or s.smem_pending):
            if s.smem_pending: lg = 0
            lg = min(lg, 15)
            parts.append(f'lgkmcnt({lg})'); s.lg = s.lg[len(s.lg) - lg:] if lg else []; s.smem_pending = False
        if parts:
            s._push(I('s_waitcnt ' + ' '.join(parts)))
            if auto: s.autowaits += 1; s.log.append((len(s.out), s.tag, 'autowait ' + ' '.join(parts)))
            return True
        return False
    def wait(s, *ids):
        vm = lg = None
        for q, name in ((s.vm, 'vm'), (s.lg, 'lg')):
            for k, (i, _) in enumerate(q):
                if i in ids:
                    left = len(q) - 1 - k
                    if name == 'vm': vm = left if vm is None else min(vm, left)
                    else: lg = left if lg is None else min(lg, left)
        return s._wait(vm, lg)
    def wait_regs(s, *toks):
        R = set().union(*[regs(t) for t in toks])
        return s.wait(*[i for q in (s.vm, s.lg) for i, w in q if w & R])
    def waitall(s, vm=True, lg=True): return s._wait(0 if vm else None, 0 if lg else None)
    def forcewait(s):
        s._push(I('s_waitcnt vmcnt(0) lgkmcnt(0)')); s.vm = []; s.lg = []; s.smem_pending = False
    def fence(s):
        s('s_nop 15'); s('s_nop 3')
    def __call__(s, text):
        if '\n' in text:
            r = None
            for l in text.split('\n'):
                l = l.strip()
                if l and not l.startswith(';'): r = s(l)
            return r
        ins = I(text)
        assert not ins.op.startswith('s_waitcnt'), 'use wait()'
        touch = ins.r | ins.w
        vm = lg = None
        for k, (i, w) in enumerate(s.vm):
            if w & touch: vm = len(s.vm) - 1 - k
        for k, (i, w) in enumerate(s.lg):
            if w & touch: lg = len(s.lg) - 1 - k
        if ins.kind == 'vmem' and len(s.vm) >= 63: vm = 62 if vm is None else min(vm, 62)
        s._wait(vm, lg, auto=True)
        d = 0; pad = 0
        for p in reversed(s.hist):
            k = need(p, ins) - d
            if k > pad: pad = k; why = p
            d += p.states
            if d > 20: break
        if pad:
            s.nops += pad; s.log.append((len(s.out), s.tag, f'nop {pad}: {why.text} -> {ins.text}'))
            while pad:
                k = min(pad, 16); s._push(I(f's_nop {k-1}')); pad -= k
        s._push(ins)
        s.n += 1
        if ins.kind == 'vmem': s.vm.append([s.n, ins.w])
        elif ins.kind == 'ds': s.lg.append([s.n, ins.w])
        elif ins.kind == 'smem': s.lg.append([s.n, ins.w]); s.smem_pending = True
        return s.n
    def text(s): return '\n'.join(s.out) + '\n'

def V(b, n=1, f='v'): return f'{f}{b}' if n == 1 else f'{f}[{b}:{b+n-1}]'
def A(b, n=1): return V(b, n, 'a')
def S(b, n=1): return V(b, n, 's')
def fbits(x):
    import struct
    return '0x%08x' % struct.unpack('<I', struct.pack('<f', x))[0]

def kernel_header(name):
    return f'.globl {name}\n.p2align 8\n.type {name},@function\n{name}:\n'
def kernel_desc(name, nv, acc, ns=102):
    return f'''.p2align 6
.amdhsa_kernel {name}
  .amdhsa_next_free_vgpr {nv}
  .amdhsa_next_free_sgpr {ns}
  .amdhsa_accum_offset {acc}
  .amdhsa_group_segment_fixed_size 0
  .amdhsa_kernarg_size 96
  .amdhsa_user_sgpr_count 2
  .amdhsa_user_sgpr_kernarg_segment_ptr 1
  .amdhsa_system_sgpr_workgroup_id_x 1
.end_amdhsa_kernel
'''
```

```python
import math
from asmlib import *
WS_Q  = 0
WS_KM = 0x240000
WS_KR = WS_KM + 0x10000
WS_VT = WS_KR + 0x4000
WS_WO = 0x280000
WS_HN = 0x340000
WS_H  = 0x580000
WS_W  = 0xA00000
WS_P  = 0x1A00000
WS_FL = 0x2C00000
WS_SIZE = 0x2D00000
WSTREAM = 486 * 1024
OOB = 0x40000000
LOG2E = 1.4426950408889634
QSCALE = 18 ** -0.5 * LOG2E
K1C = 2 * math.sqrt(2 / math.pi) * LOG2E
ALPHA = (K1C * 0.044715) ** (1 / 3)
GELU_C = K1C / ALPHA
EPS = 1e-5
def srd(a, d, lo, size):
    a(f's_mov_b32 s{d}, s{lo}')
    a(f's_mov_b32 s{d+1}, s{lo+1}')
    a(f's_mov_b32 s{d+2}, {size}')
    a(f's_mov_b32 s{d+3}, 0x20000')
```

```python
from common import *
K1_LDS = 92160 + 4096
def gen_k1(opt):
    a = Asm(); a.tag = 'k1'
    X = 0
    ACC = 72
    WF = 92
    SUM = 132
    ONE = 136
    T = 140
    vL, vXO, vP, vO4, vTA, vT4 = 150, 151, 152, 154, 155, 159
    vWoO, vNM, vVAR, vR8, vCS = 160, 161, 162, 163, 164
    vPT = 166
    sW, sRB, sCG = 32, 33, 34
    a('s_cmp_ge_u32 s2, 256')
    a('s_cbranch_scc1 K1_END')
    a('s_load_dwordx8 s[4:11], s[0:1], 0')
    a('s_load_dwordx2 s[12:13], s[0:1], 32')
    a('s_load_dwordx2 s[14:15], s[0:1], 88')
    a(f'v_lshrrev_b32 v{T}, 6, v0')
    a(f'v_and_b32 v{vL}, 63, v0')
    a(f'v_readfirstlane_b32 s{sW}, v{T}')
    a(f's_and_b32 s{sRB}, s2, 7')
    a(f's_lshl_b32 s{sRB}, s{sRB}, 2')
    a(f's_bfe_u32 s3, s2, 0x20003')
    a(f's_add_u32 s{sRB}, s{sRB}, s3')
    a(f's_lshr_b32 s{sCG}, s2, 5')
    a(f'v_and_b32 v{T}, 15, v{vL}')
    a(f'v_mul_u32_u24 v{vXO}, 1152, v{T}')
    a(f'v_and_b32 v{T+1}, 48, v{vL}')
    a(f'v_add_u32 v{vXO}, v{vXO}, v{T+1}')
    a(f's_lshl_b32 s35, s{sRB}, 2')
    a(f's_add_u32 s35, s35, s{sW}')
    a(f's_mul_i32 s36, s35, {16*1152}')
    a(f'v_lshrrev_b32 v{vR8}, 3, v{vL}')
    a(f'v_and_b32 v{T}, 6, v{vR8}')
    a(f'v_and_b32 v{vCS}, 7, v{vL}')
    a(f'v_xor_b32 v{vCS}, v{vCS}, v{T}')
    a(f'v_and_b32 v{T}, 4, v{vR8}')
    a(f'v_add_u32 v{T+2}, v{vR8}, v{T}')
    a(f's_and_b32 s37, s{sW}, 1')
    a(f's_lshl_b32 s37, s37, 4')
    a(f's_lshr_b32 s38, s{sW}, 1')
    a(f's_lshl_b32 s38, s38, 2')
    a(f's_add_u32 s37, s37, s38')
    a(f'v_add_u32 v{T+2}, s37, v{T+2}')
    a.waitall()
    srd(a, 16, 4, 2048 * 1152)
    for ks in range(18):
        a(f'buffer_load_dwordx4 {V(X+4*ks,4)}, v{vXO}, s[16:19], s36 offen offset:{64*ks}')
    srd(a, 24, 6, 576 * 1152)
    a(f's_cmp_eq_u32 s{sCG}, 7')
    a('s_cbranch_scc1 K1_PKV')
    a(f'v_mul_u32_u24 v{T+3}, 1152, v{T+2}')
    a(f'v_lshl_add_u32 v{T+3}, v{vCS}, 4, v{T+3}')
    a(f's_lshl_b32 s37, s{sCG}, 7')
    a(f's_add_u32 s38, s6, s37')
    a(f's_addc_u32 s39, s7, 0')
    a(f'v_mov_b32 v{T+4}, s38')
    a(f'v_mov_b32 v{T+5}, s39')
    a(f's_mov_b32 s40, {32*1152}')
    a('s_branch K1_PDONE')
    a.label('K1_PKV')
    a(f'v_mul_u32_u24 v{T+3}, 36, v{T+2}')
    a(f'v_and_b32 v{T}, 1, v{vCS}')
    a(f'v_lshrrev_b32 v{T+1}, 1, v{vCS}')
    a(f'v_lshlrev_b32 v{T+6}, 4, v{T}')
    a(f'v_cmp_gt_u32 vcc, 4, v{vCS}')
    a(f'v_cndmask_b32 v{T+6}, 20, v{T+6}, vcc')
    a(f'v_cndmask_b32 v{T}, v{T}, v{T+1}, vcc')
    a(f'v_add_u32 v{T+3}, v{T+3}, v{T+6}')
    a(f'v_cmp_eq_u32 vcc, 1, v{T}')
    a(f'v_mov_b32 v{T+4}, s8')
    a(f'v_mov_b32 v{T+5}, s9')
    a(f'v_mov_b32 v{T+6}, s10')
    a(f'v_mov_b32 v{T+7}, s11')
    a(f'v_cndmask_b32 v{T+4}, v{T+4}, v{T+6}, vcc')
    a(f'v_cndmask_b32 v{T+5}, v{T+5}, v{T+7}, vcc')
    a(f's_mov_b32 s40, {32*36}')
    a.label('K1_PDONE')
    a(f'v_add_co_u32 v{vP}, vcc, v{T+4}, v{T+3}')
    a('s_mov_b32 s41, 0')
    a(f'v_lshrrev_b32 v{T}, 1, v{vL}')
    a(f'v_addc_co_u32 v{vP+1}, vcc, 0, v{T+5}, vcc')
    a(f'v_and_b32 v{T+1}, 12, v{T}')
    a(f'v_lshlrev_b32 v{T+1}, 1, v{T+1}')
    a(f'v_and_or_b32 v{T+1}, v{T}, 3, v{T+1}')
    a(f'v_lshrrev_b32 v{T}, 4, v{T}')
    a(f'v_lshl_add_u32 v{T+8}, v{T}, 2, v{T+1}')
    a(f'v_and_b32 v{T}, 1, v{vL}')
    a(f'v_lshlrev_b32 v{T+9}, 4, v{T}')
    a(f's_movk_i32 s47, 1152')
    a(f'v_mad_u32_u24 v{vO4}, v{T+8}, s47, v{T+9}')
    a(f's_lshl_b32 s42, s{sW}, 10')
    a(f's_lshl_b32 s43, s{sCG}, 5')
    a(f's_add_u32 s43, s43, 896')
    stage_last = {}
    for u in range(5):
        a(f's_add_u32 s44, s{sW}, {4*u}')
        if u == 4: a('s_min_u32 s44, s44, 17')
        a(f's_mul_i32 s45, s44, 5120')
        a(f's_add_u32 m0, s45, 4096')
        a(f's_mul_i32 s45, s44, {32*1152}')
        a(f's_add_u32 s45, s45, s43')
        a(f'buffer_load_dwordx4 v{vO4}, s[24:27], s45 offen lds')
        for ks in range(4*u, min(4*u+4, 18)):
            a(f's_add_u32 m0, s42, {5120*ks}')
            if ks: a(f'v_lshl_add_u64 {V(vP,2)}, {V(vP,2)}, 0, s[40:41]')
            stage_last[u] = a(f'global_load_lds_dwordx4 {V(vP,2)}, off')
    srd(a, 28, 12, 576 * 1152)
    srd(a, 20, 14, WS_SIZE)
    a('s_min_u32 s44, s2, 161')
    a('s_mul_i32 s45, s44, 57')
    a('s_lshr_b32 s45, s45, 9')
    assert all((u * 57) >> 9 == u // 9 for u in range(162))
    a('s_mul_i32 s46, s45, 9')
    a('s_sub_u32 s46, s44, s46')
    a('s_lshl_b32 s46, s46, 2')
    a(f's_add_u32 s46, s46, s{sW}')
    a('s_lshl_b32 s48, s45, 5')
    a(f'v_add_u32 v{T}, s48, v{T+8}')
    a(f'v_lshrrev_b32 v{T+1}, 4, v{T}')
    a(f'v_lshl_add_u32 v{T+1}, v{T+1}, 1, v{T}')
    a(f'v_and_b32 v{T+2}, 60, v{T}')
    a(f'v_lshrrev_b32 v{T+2}, 1, v{T+2}')
    a(f'v_and_or_b32 v{T+2}, v{T}, 1, v{T+2}')
    a(f'v_bfe_u32 v{T+3}, v{T}, 1, 1')
    a(f'v_mad_u32_u24 v{T+2}, v{T+2}, 18, v{T+3}')
    a(f'v_add_u32 v{T+2}, 16, v{T+2}')
    a(f'v_cmp_gt_u32 vcc, 512, v{T}')
    a(f'v_cndmask_b32 v{T+1}, v{T+2}, v{T+1}, vcc')
    a(f'v_mad_u32_u24 v{vWoO}, v{T+1}, s47, v{T+9}')
    a('s_lshl_b32 s48, s46, 5')
    a('s_add_u32 m0, s42, 92160')
    a('s_mul_i32 s49, s46, 57')
    wo_ld = a(f'buffer_load_dwordx4 v{vWoO}, s[28:31], s48 offen lds')
    a('s_lshr_b32 s49, s49, 9')
    a('s_mul_i32 s50, s49, 72')
    a('s_add_u32 s50, s50, s46')
    a('s_lshr_b32 s51, s45, 1')
    a('s_mul_i32 s51, s51, 9')
    a('s_add_u32 s50, s50, s51')
    a('s_lshl_b32 s50, s50, 1')
    a('s_and_b32 s51, s45, 1')
    a('s_add_u32 s50, s50, s51')
    a('s_lshl_b32 s50, s50, 10')
    a(f's_add_u32 s50, s50, {WS_WO}')
    a(f'v_bfe_u32 v{T}, v{vL}, 2, 3')
    a(f'v_lshrrev_b32 v{T+1}, 5, v{vL}')
    a(f'v_lshlrev_b32 v{T+1}, 10, v{T+1}')
    a(f'v_lshl_add_u32 v{T+1}, v{T}, 7, v{T+1}')
    a(f'v_and_b32 v{T}, 6, v{T}')
    a(f'v_lshl_add_u32 v{T+1}, v{T}, 4, v{T+1}')
    a(f'v_and_b32 v{T}, 3, v{vL}')
    a(f'v_lshl_add_u32 v{vTA}, v{T}, 3, v{T+1}')
    for t in range(1, 4): a(f'v_xor_b32 v{vTA+t}, {32*t}, v{vTA}')
    a(f'v_lshlrev_b32 v{vT4}, 3, v{vL}')
    for i in range(4): a(f'v_mov_b32 v{ONE+i}, 0x3f803f80')
    a('s_mov_b32 s52, 0x00003f80')
    a('s_mov_b32 s53, 0x3f800000')
    a(f'v_mov_b32 v{vVAR}, 0')
    for ks in range(18):
        a(f'v_mfma_f32_16x16x32_bf16 {V(SUM,4)}, {V(ONE,4)}, {V(X+4*ks,4)}, {V(SUM,4) if ks else 0}')
    a(f'v_mul_f32 v{vNM}, {fbits(-1/576)}, v{SUM}')
    def dots(g):
        b = WF + 8 * (g % 2)
        for i in range(4):
            a(f'v_dot2_f32_bf16 v{b+2*i}, v{X+4*g+i}, s52, v{vNM}')
            a(f'v_dot2_f32_bf16 v{b+2*i+1}, v{X+4*g+i}, s53, v{vNM}')
    def cvts(g):
        b = WF + 8 * (g % 2)
        for i in range(4): a(f'v_cvt_pk_bf16_f32 v{X+4*g+i}, v{b+2*i}, v{b+2*i+1}')
    def sq(g):
        for i in range(4): a(f'v_dot2_f32_bf16 v{vVAR}, v{X+4*g+i}, v{X+4*g+i}, v{vVAR}')
    dots(0)
    for g in range(18):
        if g + 1 < 18: dots(g + 1)
        cvts(g); sq(g)
    bars = opt.get('k1_bars', {0: 1, 8: 4})
    def reads(ks):
        if ks in bars:
            a.wait(stage_last[bars[ks]])
            a('s_barrier')
        if ks == 9:
            for t in range(4): a(f'v_add_u32 v{vTA+t}, {9*5120}, v{vTA+t}')
            a(f'v_add_u32 v{vT4}, {9*5120}, v{vT4}')
        o = 5120 * (ks % 9); b = WF + 20 * (ks % 2)
        L = []
        for t in range(4):
            for h in range(2): L.append(f'ds_read_b64_tr_b16 {V(b+4*t+2*h,2)}, v{vTA+t} offset:{o+2048*h}')
        for h in range(2): L.append(f'ds_read_b64_tr_b16 {V(b+16+2*h,2)}, v{vT4} offset:{o+4096+512*h}')
        return L
    for l in reads(0): a(l)
    for ks in range(18):
        nxt = reads(ks + 1) if ks + 1 < 18 else []
        b = WF + 20 * (ks % 2)
        for t in range(5):
            for l in nxt[2*t:2*t+2]: a(l)
            a(f'v_mfma_f32_16x16x32_bf16 {V(ACC+4*t,4)}, {V(b+4*t,4)}, {V(X+4*ks,4)}, {V(ACC+4*t,4) if ks else 0}')
    a.wait(wo_ld)
    a(f'v_add_u32 v{T}, s42, v{vT4}')
    a(f'ds_read_b64_tr_b16 {V(WF,2)}, v{T} offset:{92160-9*5120}')
    a(f'ds_read_b64_tr_b16 {V(WF+2,2)}, v{T} offset:{92160-9*5120+512}')
    a(f'v_mov_b32 v{T+1}, v{vVAR}')
    a(f'v_lshlrev_b32 v{T+4}, 4, v{vL}')
    a(f'v_lshrrev_b32 v{T+5}, 4, v{vL}')
    a(f'v_permlane32_swap_b32 v{T+1}, v{vVAR}')
    a(f'v_add_f32 v{vVAR}, v{vVAR}, v{T+1}')
    a(f'v_mov_b32 v{T+1}, v{vVAR}')
    a(f'v_and_b32 v{T+6}, 15, v{vL}')
    a(f'v_mov_b32 v{T+2}, {fbits(EPS)}')
    a(f'v_permlane16_swap_b32 v{T+1}, v{vVAR}')
    a(f'v_add_f32 v{vVAR}, v{vVAR}, v{T+1}')
    a(f'v_fmac_f32 v{T+2}, {fbits(1/576)}, v{vVAR}')
    a(f'v_rsq_f32 v{T+2}, v{T+2}')
    a(f'buffer_store_dwordx4 {V(WF,4)}, v{T+4}, s[20:23], s50 offen')
    a(f'v_mul_f32 v{T+3}, {fbits(QSCALE)}, v{T+2}')
    a(f'v_lshlrev_b32 v{T+7}, 3, v{T+5}')
    a(f'v_mad_u32_u24 v{T+7}, v{T+6}, s47, v{T+7}')
    def scale_pack(t, sc):
        for r in range(4): a(f'v_mul_f32 v{ACC+4*t+r}, v{sc}, v{ACC+4*t+r}')
        a(f'v_cvt_pk_bf16_f32 v{ACC+4*t}, v{ACC+4*t}, v{ACC+4*t+1}')
        a(f'v_cvt_pk_bf16_f32 v{ACC+4*t+1}, v{ACC+4*t+2}, v{ACC+4*t+3}')
    scale_pack(4, T+3)
    a(f's_add_u32 s44, s36, s43')
    a(f'buffer_store_dwordx2 {V(ACC+16,2)}, v{T+7}, s[20:23], s44 offen')
    a(f's_cmp_eq_u32 s{sCG}, 7')
    a('s_cbranch_scc1 K1_EKV')
    a(f's_lshl_b32 s44, s{sCG}, 7')
    a(f's_add_u32 s44, s44, s36')
    for t in range(4):
        scale_pack(t, T+3)
        a(f'buffer_store_dwordx2 {V(ACC+4*t,2)}, v{T+7}, s[20:23], s44 offen offset:{32*t}')
    a('s_endpgm')
    a.label('K1_EKV')
    for t in range(3): scale_pack(t, T+2)
    a(f'v_lshlrev_b32 v{T}, 3, v{T+5}')
    a(f'v_lshl_add_u32 v{T}, v{T+6}, 5, v{T}')
    a('s_lshl_b32 s44, s35, 9')
    a(f's_add_u32 s44, s44, {WS_KM}')
    a(f'buffer_store_dwordx2 {V(ACC,2)}, v{T}, s[20:23], s44 offen')
    a(f'v_lshlrev_b32 v{T+1}, 1, v{T+6}')
    a(f'v_lshl_add_u32 v{T}, v{T+5}, 7, v{T+1}')
    a('s_mul_i32 s44, s35, 640')
    a(f's_add_u32 s44, s44, {WS_VT}')
    a(f'buffer_store_short v{ACC+4}, v{T}, s[20:23], s44 offen')
    a(f'buffer_store_short_d16_hi v{ACC+4}, v{T}, s[20:23], s44 offen offset:32')
    a(f'buffer_store_short v{ACC+5}, v{T}, s[20:23], s44 offen offset:64')
    a(f'buffer_store_short_d16_hi v{ACC+5}, v{T}, s[20:23], s44 offen offset:96')
    a(f'v_mov_b32 v{T+8}, {OOB}')
    a(f'v_cmp_eq_u32 vcc, 3, v{T+5}')
    a(f'v_mov_b32 v{ACC+10}, v{ACC+9}')
    a(f'v_mov_b32 v{ACC+11}, 0x3f803f80')
    a(f'v_cndmask_b32 v{T}, v{T+8}, v{T+1}, vcc')
    a(f'buffer_store_short v{ACC+10}, v{T}, s[20:23], s44 offen offset:512')
    a(f'buffer_store_short_d16_hi v{ACC+10}, v{T}, s[20:23], s44 offen offset:544')
    a(f'buffer_store_short v{ACC+11}, v{T}, s[20:23], s44 offen offset:576')
    a(f'v_cmp_eq_u32 vcc, 1, v{T+5}')
    a(f'v_lshlrev_b32 v{T+1}, 4, v{T+6}')
    a(f's_lshr_b32 s44, s{sRB}, 1')
    a(f'v_cndmask_b32 v{T+9}, v{T+8}, v{T+1}, vcc')
    a('s_lshl_b32 s44, s44, 10')
    a(f's_and_b32 s45, s{sRB}, 1')
    a('s_lshl_b32 s45, s45, 3')
    a('s_add_u32 s44, s44, s45')
    a(f's_lshl_b32 s45, s{sW}, 8')
    a('s_add_u32 s44, s44, s45')
    a(f's_add_u32 s44, s44, {WS_KR}')
    a(f'buffer_store_dwordx2 {V(ACC+10,2)}, v{T+9}, s[20:23], s44 offen')
    a.label('K1_END')
    a('s_endpgm')
    return a, dict(name='k1_kernel', nv=168, acc=168, lds=K1_LDS, grid=256, block=256)
```

```python
from common import *
L_OP = 0
L_AF = 40960
L_BAD = L_AF + 9216
L_MX = L_BAD + 64
L_ST = L_MX + 8192
K2_LDS = L_ST + 65536
aKM, aV, aKR, aQM, aQR = 0, 64, 192, 208, 240
vS, vO, vWA, vAF, vF, vX = 0, 64, 96, 132, 140, 160
vL, vL16, vIDX, vIDX2, vZ, vOPW, vOPW8, vOPR, vOPR8, vQO, vKO, vVO, vXO, vSWG, vTA = 172, 173, 174, 175, 176, 178, 179, 180, 181, 182, 183, 184, 185, 186, 252
vAFW, vAFW2 = 182, 183
vRING = 188
sW, sMODE, sBAD = 32, 33, 34

class Sched:
    def __init__(s): s.d = {}
    def put(s, it, slot, *items): s.d.setdefault((it, slot), []).extend(items)
    def spread(s, it0, slots, items, per=1):
        it = it0; k = 0; items = list(items)
        while items:
            for _ in range(per):
                if items: s.put(it, slots[k], items.pop(0))
            k += 1
            if k == len(slots): k = 0; it += 1
        return it
    def run(s, a, it, slot):
        for x in s.d.pop((it, slot), []):
            if callable(x): x()
            else: a(x)

def gen_k2(opt):
    a = Asm(); a.tag = 'k2'
    T = vF
    a('s_cmp_ge_u32 s2, 256')
    a('s_cbranch_scc1 K2_END')
    a('s_load_dwordx2 s[4:5], s[0:1], 0')
    a('s_load_dwordx2 s[14:15], s[0:1], 88')
    a('s_load_dwordx4 s[8:11], s[0:1], 48')
    a('s_load_dwordx2 s[12:13], s[0:1], 64')
    a(f'v_lshrrev_b32 v{T}, 6, v0')
    a(f'v_and_b32 v{vL}, 63, v0')
    a(f'v_readfirstlane_b32 s{sW}, v{T}')
    a(f's_mov_b32 s{sMODE}, 0')
    a(f'v_lshlrev_b32 v{vL16}, 4, v{vL}')
    a(f'v_and_b32 v{T}, 31, v{vL}')
    a(f'v_lshrrev_b32 v{T+1}, 5, v{vL}')
    a(f'v_lshlrev_b32 v{T+2}, 4, v{T+1}')
    a(f'v_lshl_add_u32 v{vKO}, v{T}, 5, v{T+2}')
    a(f'v_and_b32 v{T+3}, 7, v{vL}')
    a(f'v_bfe_u32 v{T+4}, v{vL}, 3, 2')
    a(f'v_mul_u32_u24 v{T+5}, 1152, v{T+3}')
    a(f'v_mad_u32_u24 v{T+5}, v{T+4}, 36, v{T+5}')
    a(f'v_add_u32 v{vQO}, v{T+5}, v{T+2}')
    a(f'v_mov_b32 v187, v{T+5}')
    a(f'v_and_b32 v{T+6}, 9, v{T}')
    a(f'v_bfe_u32 v{T+7}, v{T}, 1, 1')
    a(f'v_lshl_add_u32 v{T+6}, v{T+7}, 2, v{T+6}')
    a(f'v_bfe_u32 v{T+7}, v{T}, 2, 1')
    a(f'v_lshl_add_u32 v{T+6}, v{T+7}, 1, v{T+6}')
    a(f'v_add_u32 v{T+7}, 16, v{T+7}')
    a(f'v_and_b32 v{T+8}, 1, v{T}')
    a(f'v_cmp_eq_u32 vcc, 1, v{T+8}')
    a(f'v_and_b32 v{T+9}, 26, v{T}')
    a(f's_mul_i32 s36, s2, {8*1152}')
    a(f'v_cndmask_b32 v{T+7}, v{T+7}, 18, vcc')
    a(f'v_cmp_gt_u32 vcc, 16, v{T}')
    a(f's_lshl_b32 s37, s{sW}, 14')
    a(f's_add_u32 s37, s37, {WS_KM}')
    a(f'v_cndmask_b32 v{T+6}, v{T+7}, v{T+6}, vcc')
    a(f'v_lshl_add_u32 v{T+6}, v{T+6}, 5, v{T+2}')
    a(f'v_cmp_lt_u32 vcc, 16, v{T+9}')
    a(f'v_mov_b32 v{T+8}, {OOB}')
    a(f's_lshl_b32 s38, s{sW}, 12')
    a(f'v_cndmask_b32 v{vVO}, v{T+6}, v{T+8}, vcc')
    a(f's_add_u32 s38, s38, {WS_KR}')
    a(f's_mul_i32 s39, s{sW}, {32*640}')
    a(f's_add_u32 s39, s39, {WS_VT}')
    for t in range(8): a(f'v_accvgpr_write_b32 a{aQR+2*t+1}, 0')
    a.waitall()
    srd(a, 20, 14, WS_SIZE)
    a.label('K2_START')
    def ldq(t):
        return [f'buffer_load_dwordx4 {A(aQM+4*t,4)}, v{vQO}, s[20:23], s36 offen offset:{144*t}',
                f'buffer_load_dword a{aQR+2*t}, v187, s[20:23], s36 offen offset:{144*t+32}']
    def ldk(p):
        L = []
        if p % 2 == 0:
            L += [f's_add_u32 s40, s37, {2048*p}',
                  f'buffer_load_dwordx4 {A(aKR+2*p,4)}, v{vL16}, s[20:23], s38 offen offset:{512*p}']
        L += [f'buffer_load_dwordx4 {A(aKM+8*p+4*t,4)}, v{vKO}, s[20:23], s40 offen offset:{2048*(p%2)+1024*t}' for t in range(2)]
        return L
    def ldv(p):
        return [f's_add_u32 s41, s39, {2560*p}'] + [f'buffer_load_dwordx4 {A(aV+16*p+4*g,4)}, v{vVO}, s[20:23], s41 offen offset:{640*g}' for g in range(4)]
    for l in ldq(0) + ldk(0): a(l)
    for p in range(8):
        if p + 1 < 8:
            for l in ldk(p + 1): a(l)
        for l in ldv(p): a(l)
    for l in ldq(1): a(l)
    a(f's_mov_b64 s[{sBAD}:{sBAD+1}], 0')
    a(f'v_mov_b32 v{vIDX}, 0xdddddddd')
    a(f'v_mov_b32 v{vZ}, 0')
    a(f'v_mov_b32 v{vZ+1}, 0')
    a(f'v_and_b32 v{T}, 1, v{vL}')
    a(f'v_mul_u32_u24 v{vIDX2}, 0xaaaa, v{T}')
    a(f'v_add_u32 v{vIDX2}, 0x4444, v{vIDX2}')
    for i in range(36): a(f'v_mov_b32 v{vWA+i}, 0')
    for i in range(32): a(f'v_mov_b32 v{vO+i}, 0')
    a(f's_mul_i32 s42, s{sW}, 2560')
    a(f's_mul_i32 s43, s{sW}, 10240')
    a(f'v_add_u32 v{vOPW}, s42, v{vL16}')
    a(f'v_lshl_add_u32 v{vOPW8}, v{vL}, 3, s42')
    a(f'v_add_u32 v{vOPR}, s43, v{vL16}')
    a(f'v_lshl_add_u32 v{vOPR8}, v{vL}, 3, s43')
    srd(a, 16, 4, 2048 * 1152)
    a(f'v_and_b32 v{T}, 31, v{vL}')
    a(f'v_lshrrev_b32 v{T+1}, 5, v{vL}')
    a(f'v_lshlrev_b32 v{T}, 4, v{T}')
    a(f's_movk_i32 s44, 1152')
    a(f'v_mad_u32_u24 v{vXO}, v{T+1}, s44, v{T}')
    a(f's_mul_i32 s45, s{sW}, 2304')
    a(f's_add_u32 s45, s45, s36')
    a(f's_mul_i32 s46, s{sW}, {81*2048}')
    a(f's_add_u32 s46, s46, {WS_WO}')
    a(f'v_lshrrev_b32 v{T}, 3, v{vL}')
    a(f'v_and_b32 v{T+1}, 6, v{T}')
    a(f'v_and_b32 v{T+2}, 7, v{vL}')
    a(f'v_xor_b32 v{T+2}, v{T+2}, v{T+1}')
    a(f'v_lshlrev_b32 v{T+2}, 4, v{T+2}')
    vSD, vSG, vSX = vRING + 60, vRING + 61, vRING + 62
    a(f'v_mad_u32_u24 v{vSD}, v{T}, s44, v{T+2}')
    a(f'v_and_b32 v{T+1}, 4, v{T}')
    a(f'v_add_u32 v{T}, v{T}, v{T+1}')
    a(f's_movk_i32 s44, 9216')
    a(f'v_mad_u32_u24 v{vSG}, v{T}, s44, v{T+2}')
    a(f's_lshl_b32 s47, s{sW}, 14')
    a(f's_add_u32 s47, s47, {L_ST}')
    a(f'v_bfe_u32 v{T}, v{vL}, 2, 3')
    a(f'v_lshrrev_b32 v{T+1}, 5, v{vL}')
    a(f'v_lshlrev_b32 v{T+1}, 10, v{T+1}')
    a(f'v_lshl_add_u32 v{T+1}, v{T}, 7, v{T+1}')
    a(f'v_and_b32 v{T}, 6, v{T}')
    a(f'v_lshl_add_u32 v{T+1}, v{T}, 4, v{T+1}')
    a(f'v_and_b32 v{T}, 3, v{vL}')
    a(f'v_lshl_add_u32 v{T+1}, v{T}, 3, v{T+1}')
    for t in range(4):
        a(f'v_xor_b32 v{vTA+t}, {32*t}, v{T+1}')
        a(f'v_add_u32 v{vTA+t}, s47, v{vTA+t}')
    a('s_and_b32 s48, s2, 7')
    a('s_lshr_b32 s49, s2, 3')
    a('s_lshl_b32 s49, s49, 2')
    a(f's_add_u32 s49, s49, s{sW}')
    a('s_mul_i32 s50, s48, 1152')
    a(f's_mul_i32 s51, s48, {576*1152}')
    a(f's_mul_i32 s52, s48, {4*WSTREAM}')
    a(f's_add_u32 s52, s52, {WS_W}')
    assert all((u * 57) >> 9 == u // 9 for u in range(162))
    for u in range(4):
        a(f's_add_u32 s53, s49, {128*u}')
        a('s_min_u32 s53, s53, 485')
        a('s_cmp_ge_u32 s53, 162')
        a(f's_cselect_b32 s{64+4*u}, s10, s8')
        a(f's_cselect_b32 s{65+4*u}, s11, s9')
        a('s_cselect_b32 s54, 162, 0')
        a('s_cselect_b32 s55, 1024, 0')
        a('s_cmp_ge_u32 s53, 324')
        a(f's_cselect_b32 s{64+4*u}, s12, s{64+4*u}')
        a(f's_cselect_b32 s{65+4*u}, s13, s{65+4*u}')
        a('s_cselect_b32 s54, 324, s54')
        a(f's_cselect_b32 s55, {324*1024}, s55')
        a(f's_cselect_b32 s{84+u}, {8*1152}, s44')
        a(f's_cselect_b32 s56, s51, s50')
        a(f's_cselect_b32 s57, 10, 11')
        a(f's_cselect_b64 vcc, -1, 0')
        a(f's_mov_b32 s{66+4*u}, {576*4608*2}')
        a(f's_mov_b32 s{67+4*u}, 0x20000')
        if u == 2: a(f'v_cndmask_b32 v{vSX}, v{vSG}, v{vSD}, vcc')
        a(f's_mov_b32 s58, {16*9216}')
        a(f's_cselect_b32 s{84+u}, {8*1152}, s58')
        a(f's_mov_b32 s58, {4*9216}')
        a(f's_cselect_b32 s{88+u}, {16*1152}, s58')
        a(f's_mov_b32 s58, {32*9216}')
        a(f's_cselect_b32 s58, {32*1152}, s58')
        a(f's_mov_b32 s59, 36864')
        a(f's_cselect_b32 s59, 18432, s59')
        a('s_sub_u32 s53, s53, s54')
        a('s_mul_i32 s60, s53, 57')
        a('s_lshr_b32 s60, s60, 9')
        a('s_mul_i32 s61, s60, 9')
        a('s_sub_u32 s61, s53, s61')
        a('s_mul_i32 s58, s58, s60')
        a('s_add_u32 s58, s58, s56')
        a('s_lshl_b32 s62, s61, 7')
        a(f's_add_u32 s{80+u}, s58, s62')
        a('s_lshl_b32 s60, s60, s57')
        a('s_add_u32 s60, s60, s55')
        a('s_add_u32 s60, s60, s52')
        a('s_lshr_b32 s62, s61, 1')
        a(f's_mul_i32 s62, s62, {WSTREAM}')
        a('s_and_b32 s63, s61, 1')
        a('s_lshl_b32 s63, s63, 2')
        a('s_cmp_eq_u32 s61, 8')
        a('s_cselect_b32 s62, 0, s62')
        a('s_cselect_b32 s63, 8, s63')
        a(f's_cselect_b32 s{96+u}, {WSTREAM}, s59')
        a('s_mul_i32 s63, s63, s59')
        a('s_add_u32 s60, s60, s62')
        a(f's_add_u32 s{92+u}, s60, s63')
    swv = [vSG, vSG, vSX, vSD]
    sc = Sched()
    MEM = ['P3', 'P0', 'P1', 'P2']
    ALL = ['P3', 'R', 'P0', 'P1', 'M0', 'M1', 'P2']
    ids = {}
    def rec(key, text): return lambda: ids.__setitem__(key, a(text))
    sc.spread(5, MEM, sum([ldq(t) for t in range(2, 8)], []))
    sc.spread(8, MEM, [f'buffer_load_dwordx4 {V(vX+4*e,4)}, v{vXO}, s[16:19], s45 offen offset:{384*e}' for e in range(3)])
    it = 9
    for u in range(4):
        for i in range(4):
            pre = {0: [f's_mov_b32 s53, s{80+u}'], 1: [f's_add_u32 s53, s{80+u}, s{84+u}'], 2: [f's_add_u32 s53, s{80+u}, s{88+u}'], 3: [f's_add_u32 s53, s53, s{84+u}']}[i]
            sc.put(it, MEM[i], f's_add_u32 m0, s47, {4096*u+1024*i}', *pre,
                   rec(('dma', u, i), f'buffer_load_dwordx4 v{swv[u]}, s[{64+4*u}:{67+4*u}], s53 offen lds'))
        it += 1
    it = opt.get('swz_start', 20)
    for u in range(4):
        tb = vRING + 16 * (u % 2)
        sc.put(it, 'P3', lambda u=u: a.wait(ids[('dma', u, 3)]))
        sc.spread(it, ALL + ['X1'], [f'ds_read_b64_tr_b16 {V(tb+4*t+2*h,2)}, v{vTA+t} offset:{4096*u+2048*h}' for t in range(4) for h in range(2)])
        for t in range(4):
            sc.put(it + 1, MEM[t], f's_mov_b32 s53, s{92+u}' if t == 0 else f's_add_u32 s53, s53, s{96+u}',
                   f'buffer_store_dwordx4 {V(tb+4*t,4)}, v{vL16}, s[20:23], s53 offen')
        it += 2
    def opw(t):
        o = vO + 16 * (t % 2); off = (t % 4) * 10240
        return [f'ds_write_b128 v{vOPW}, {V(o,4)} offset:{off}', f'ds_write_b128 v{vOPW}, {V(o+4,4)} offset:{off+1024}',
                f'ds_write_b64 v{vOPW8}, {V(o+8,2)} offset:{off+2048}']
    for t in range(7):
        sc.spread(8 * (t + 1), ['P0', 'P1', 'P2'], opw(t))
        if t < 6:
            o = vO + 16 * (t % 2)
            sc.put(8 * (t + 1) + 2, 'P2', lambda: a.waitall(vm=False))
            sc.put(8 * (t + 1) + 2, 'X1', f'v_mfma_f32_32x32x8bf16_1k {V(o,16)}, {V(vZ,2)}, {V(vZ,2)}, 0')
    def fin_items(half):
        L = []
        rd = lambda s, b: [f'ds_read_b128 {V(b,4)}, v{vOPR} offset:{2560*s}', f'ds_read_b128 {V(b+4,4)}, v{vOPR} offset:{2560*s+1024}',
                           f'ds_read_b64 {V(b+8,2)}, v{vOPR8} offset:{2560*s+2048}']
        F, G = vF, vF + 10
        L += rd(0, F) + rd(1, G)
        for s in range(1, 4):
            for c, (lo, n) in enumerate(((0, 4), (4, 4), (8, 2))):
                L += [f'v_add_f32 v{F+i}, v{F+i}, v{G+i}' for i in range(lo, lo + n)]
                if s < 3: L.append(rd(s + 1, G)[c])
        L += [f'v_rcp_f32 v{G}, v{F+9}',
              f'v_subrev_u32 v{G+1}, 0x33800000, v{F+9}',
              f'v_cmp_le_u32 vcc, 0x20000000, v{G+1}']
        L += [f'v_mul_f32 v{F+i}, v{G}, v{F+i}' for i in range(9)]
        L += [f's_or_b64 s[{sBAD}:{sBAD+1}], s[{sBAD}:{sBAD+1}], vcc']
        L += [f'v_cvt_pk_bf16_f32 v{F+i}, v{F+2*i}, v{F+2*i+1}' for i in range(4)]
        L += [f'v_cvt_pk_bf16_f32 v{F+8}, v{F+8}, v{F+8}']
        L += [f'ds_write_b128 v{vKO}, {V(F,4)} offset:{L_AF+4096*half}', f'ds_write_b16 v{vVO}, v{F+8} offset:{L_AF+8192+512*half}']
        return L
    afw = [f'v_and_b32 v{T}, 7, v{vL}', f'v_lshrrev_b32 v{T+1}, 5, v{vL}', f'v_lshl_add_u32 v{T}, v{T}, 1, v{T+1}',
           f'v_bfe_u32 v{T+1}, v{vL}, 3, 2', f'v_lshlrev_b32 v{T}, 4, v{T}',
           f's_lshl_b32 s53, s{sW}, 10', f'v_lshl_add_u32 v{vOPW8+0}, v{vL}, 3, s42',
           f'v_lshl_add_u32 v{T+2}, v{T+1}, 8, v{T}', f'v_add_u32 v{vKO}, s53, v{T+2}',
           f's_lshr_b32 s53, s{sW}, 1', 's_lshl_b32 s53, s53, 8', f's_and_b32 s54, s{sW}, 1', 's_lshl_b32 s54, s54, 3', 's_add_u32 s53, s53, s54',
           f'v_lshl_add_u32 v{T+2}, v{T+1}, 1, v{T}', f'v_add_u32 v{vVO}, s53, v{T+2}']
    afw.pop(6)
    sc.spread(16, ALL, afw)
    sc.put(33, 'P3', lambda: a.waitall(vm=False), 's_barrier')
    last = sc.spread(33, ['P0', 'P1', 'M0', 'M1', 'P2', 'X2'], fin_items(0), per=2)
    assert last <= 39, last
    sc.put(39, 'X2', lambda: a.waitall(vm=False), 's_barrier')
    blkreg = {}
    def wo_ld(b, reg, f):
        blkreg[b] = V(reg, 8, f)
        L = []
        L.append(f's_add_u32 s53, s46, {2048*b}')
        return [[L[0], f'buffer_load_dwordx4 {V(reg,4,f)}, v{vL16}, s[20:23], s53 offen'],
                [f'buffer_load_dwordx4 {V(reg+4,4,f)}, v{vL16}, s[20:23], s53 offen offset:1024']]
    def wo_mm(b):
        t, dt = divmod(b, 9)
        return f'v_smfmac_f32_16x16x64_bf16 {V(vWA+4*dt,4)}, {V(vAF+4*(t%2),4)}, {blkreg[b]}, v{vIDX2}'
    def af_rd(t): return f'ds_read_b128 {V(vAF+4*(t%2),4)}, v{vL16} offset:{L_AF+1024*t}'
    LS = ['P3', 'R', 'P0', 'P1', 'M0', 'P2']
    order = ['P3', 'R', 'P0', 'X0', 'P1', 'M0', 'M1', 'P2', 'X1', 'X2']
    free = [(vRING + 8 * i, 'v', (30, 0)) for i in range(8)]
    free += [(aQM, 'a', (32, 0)), (aQM + 8, 'a', (32, 0))]
    later = [(aQM + 16, 'a', (48, 0))]
    for p in range(8): later.append((aKM + 8 * p, 'a', (55 + p, 7)))
    for p in range(7):
        later += [(aV + 16 * p, 'a', (56 + p, 5)), (aV + 16 * p + 8, 'a', (57 + p, 1))]
    later.append((aV + 112, 'a', (63, 5)))
    mm_at = {}
    it = 40; XS = ['X0', 'X1', 'X2']
    k = 1
    for b in range(36):
        mm_at[b] = (it, XS[k]); k += 1
        if k == 3 or (k == 2 and it % 2 == 1): k = 0; it += 1
    assert it <= 56, it
    nb = 0; pend = []
    pool = free + later
    for it in range(34, 64):
        for si, sl in enumerate(order):
            for b, (i2, s2) in mm_at.items():
                if (i2, s2) == (it, sl):
                    assert b in blkreg, b
                    reg = int(re.findall(r'\d+', blkreg[b])[0])
                    pool.append((reg, blkreg[b][0], (it, si + 1)))
                    if b % 9 == 0 and b > 0: pass
                    sc.put(it, sl, lambda b=b: a(wo_mm(b)))
            if sl in LS:
                if not pend and nb < 81:
                    av = [x for x in pool if x[2] <= (it, si)]
                    if av:
                        x = av[0]; pool.remove(x); pend = wo_ld(nb, x[0], x[1]); nb += 1
                if pend: sc.put(it, sl, *pend.pop(0))
    sc.put(40, 'P3', af_rd(0))
    for t in range(1, 4):
        i2, s2 = mm_at[9 * (t - 1) + 3]
        sc.put(i2, 'M1', af_rd(t))
    def Pm(it, g):
        t, p = divmod(it, 8); buf = vS + 32 * (it % 2)
        return f'v_smfmac_f32_32x32x32_bf16 {V(vO+16*(t%2),16)}, {A(aV+16*p+4*g,4)}, {V(buf+8*g,8)}, v{vIDX}'
    def Rm(it):
        t, p = divmod(it, 8); buf = vS + 32 * (it % 2)
        return f'v_mfma_f32_32x32x4bf16_1k {V(buf,32)}, {A(aKR+2*p,2)}, {A(aQR+2*t,2)}, 0'
    def Mm(it, h):
        t, p = divmod(it, 8); buf = vS + 32 * (it % 2) + 16 * h
        return f'v_mfma_f32_32x32x16_bf16 {V(buf,16)}, {A(aKM+8*p+4*h,4)}, {A(aQM+4*t,4)}, {V(buf,16)}'
    a.tag = 'k2 pre'
    a(Rm(0)); a(Mm(0, 0)); a(Mm(0, 1))
    for it in range(64):
        a.tag = f'k2 it{it}'
        buf = vS + 32 * (it % 2)
        e = iter(range(32))
        def E(n):
            for _ in range(n):
                i = next(e); a(f'v_exp_f32 v{buf+i}, v{buf+i}')
        nx = it + 1 < 64
        E(2)
        if it: a(Pm(it - 1, 3))
        sc.run(a, it, 'P3'); E(3)
        if nx: a(Rm(it + 1))
        sc.run(a, it, 'R'); E(8)
        a(Pm(it, 0)); sc.run(a, it, 'P0'); E(3); sc.run(a, it, 'X0'); E(2)
        a(Pm(it, 1)); sc.run(a, it, 'P1'); E(3)
        if nx: a(Mm(it + 1, 0))
        sc.run(a, it, 'M0'); E(3)
        if nx: a(Mm(it + 1, 1))
        sc.run(a, it, 'M1'); E(3)
        a(Pm(it, 2)); sc.run(a, it, 'P2'); E(3); sc.run(a, it, 'X1'); E(2); sc.run(a, it, 'X2')
    assert not sc.d, sc.d.keys()
    a.tag = 'k2 tail'
    for x in pend:
        for l in x: a(l)
    rest = [(x[0], x[1]) for x in pool] + [(vS + 8 * i, 'v') for i in range(4)] + [(aKR, 'a'), (aKR + 8, 'a'), (aQM + 24, 'a')]
    after = [(aV + 120, 'a')] + [(vS + 32 + 8 * i, 'v') for i in range(4)]
    def more(lst, n):
        nonlocal nb
        while lst and n and nb < 81:
            r, f = lst.pop(0)
            for x in wo_ld(nb, r, f):
                for l in x: a(l)
            nb += 1; n -= 1
    more(rest, 1)
    a(Pm(63, 3))
    more(rest, 4)
    for l in opw(7): a(l)
    more(rest, 99); more(after, 99)
    print('k2: Wo blocks issued before tail compute:', nb)
    a.waitall(vm=False)
    a('s_barrier')
    for l in fin_items(1): a(l)
    a(f's_cmp_lg_u64 s[{sBAD}:{sBAD+1}], 0')
    a('s_cselect_b32 s53, 1, 0')
    a(f'v_mov_b32 v{T+4}, s53')
    a(f's_lshl_b32 s54, s{sW}, 2')
    a(f'v_mov_b32 v{T+5}, s54')
    a(f'ds_write_b32 v{T+5}, v{T+4} offset:{L_BAD}')
    a.waitall(vm=False)
    a('s_barrier')
    a(f'ds_read_b128 {V(T,4)}, v{vZ} offset:{L_BAD}')
    a(af_rd(4)); a(af_rd(5))
    a(f'v_or3_b32 v{T}, v{T}, v{T+1}, v{T+2}')
    a(f'v_or_b32 v{T}, v{T}, v{T+3}')
    a(f'v_readfirstlane_b32 s53, v{T}')
    a(f's_andn2_b32 s53, s53, s{sMODE}')
    a('s_cbranch_scc1 K2_FALLBACK')
    for b in range(36, 81):
        a(wo_mm(b))
        if nb < 81:
            reg = int(re.findall(r'\d+', blkreg[b])[0]); more([(reg, blkreg[b][0])], 1)
        if b % 9 == 8 and b // 9 + 2 <= 8: a(af_rd(b // 9 + 2))
    a(f'v_lshrrev_b32 v{T}, 4, v{vL}')
    a(f'v_and_b32 v{T+1}, 15, v{vL}')
    a(f'v_mul_u32_u24 v{T}, {2*2336}, v{T}')
    a(f'v_lshl_add_u32 v{T}, v{T+1}, 2, v{T}')
    a(f's_mul_i32 s53, s{sW}, 576')
    a(f'v_add_u32 v{T}, s53, v{T}')
    a(f'v_add_u32 v{T+1}, 2336, v{T}')
    a(f'v_and_b32 v{T+2}, 31, v{vL}')
    a(f'v_lshrrev_b32 v{T+3}, 5, v{vL}')
    a(f'v_mul_u32_u24 v{T+3}, 2336, v{T+3}')
    a(f'v_lshl_add_u32 v{T+2}, v{T+2}, 5, v{T+3}')
    a(f's_mul_i32 s53, s{sW}, {2*2336}')
    a(f'v_add_u32 v{T+2}, s53, v{T+2}')
    for dt in range(9):
        a(f'v_add_f32 v{vWA+4*dt}, v{vWA+4*dt}, v{vWA+4*dt+1}')
        a(f'v_add_f32 v{vWA+4*dt+2}, v{vWA+4*dt+2}, v{vWA+4*dt+3}')
        if dt % 2 == 1:
            for k in range(2): a(f'ds_write2_b32 v{T+k}, v{vWA+4*dt-4+2*k}, v{vWA+4*dt+2*k} offset0:{16*dt-16} offset1:{16*dt}')
    for k in range(2): a(f'ds_write_b32 v{T+k}, v{vWA+32+2*k} offset:512')
    H = vS; XU = vS + 24; SU = T + 4
    for e in range(12):
        a(f'v_lshlrev_b32 v{XU+2*e}, 16, v{vX+e}')
        a(f'v_and_b32 v{XU+2*e+1}, 0xffff0000, v{vX+e}')
    a(f'v_mov_b32 v{SU}, 0'); a(f'v_mov_b32 v{SU+1}, 0'); a(f'v_mov_b32 v{SU+2}, 0'); a(f'v_mov_b32 v{SU+3}, 0')
    a('s_mov_b32 s54, 0x00ffffff'); a('s_mov_b32 s55, 0x00ffffff')
    a.waitall(vm=False)
    a('s_barrier')
    a('s_mov_b64 exec, s[54:55]')
    for e in range(3):
        for k in range(2): a(f'ds_read_b128 {V(H+8*e+4*k,4)}, v{T+2} offset:{768*e+16*k}')
    for i in range(12):
        a(f'v_pk_add_f32 {V(H+2*i,2)}, {V(H+2*i,2)}, {V(XU+2*i,2)}')
        a(f'v_pk_add_f32 {V(SU,2)}, {V(SU,2)}, {V(H+2*i,2)}')
    def red32(r):
        a('s_mov_b64 exec, -1')
        a(f'v_add_f32 v{r}, v{r}, v{r+1}')
        for m in ('quad_perm:[1,0,3,2]', 'quad_perm:[2,3,0,1]', 'row_half_mirror', 'row_mirror'):
            a(f'v_add_f32_dpp v{r}, v{r}, v{r} {m} row_mask:0xf bank_mask:0xf')
        a(f'v_mov_b32 v{r+1}, v{r}')
        a(f'v_permlane16_swap_b32 v{r+1}, v{r}')
        a(f'v_add_f32 v{r}, v{r}, v{r+1}')
        a('s_mov_b64 exec, s[54:55]')
    a(f'v_lshlrev_b32 v{T+3}, 1, v{vXO}')
    a('s_lshl_b32 s53, s45, 1')
    a(f's_add_u32 s53, s53, {WS_H}')
    for e in range(3):
        for k in range(2): a(f'buffer_store_dwordx4 {V(H+8*e+4*k,4)}, v{T+3}, s[20:23], s53 offen offset:{768*e+16*k}')
    red32(SU)
    a(f'v_mul_f32 v{SU}, {fbits(-1/576)}, v{SU}')
    a(f'v_mov_b32 v{SU+1}, v{SU}')
    for i in range(12):
        a(f'v_pk_add_f32 {V(XU+2*i,2)}, {V(H+2*i,2)}, {V(SU,2)}')
        a(f'v_pk_fma_f32 {V(SU+2,2)}, {V(XU+2*i,2)}, {V(XU+2*i,2)}, {V(SU+2,2)}')
    red32(SU + 2)
    a(f'v_mov_b32 v{SU}, {fbits(EPS)}')
    a(f'v_fmac_f32 v{SU}, {fbits(1/576)}, v{SU+2}')
    a(f'v_rsq_f32 v{SU}, v{SU}')
    a(f's_add_u32 s53, s45, {WS_HN}')
    a(f'v_mul_f32 v{SU}, {fbits(ALPHA)}, v{SU}')
    a(f'v_mov_b32 v{SU+1}, v{SU}')
    for e in range(3):
        for i in range(4 * e, 4 * e + 4): a(f'v_pk_mul_f32 {V(XU+2*i,2)}, {V(XU+2*i,2)}, {V(SU,2)}')
        for i in range(4 * e, 4 * e + 4): a(f'v_cvt_pk_bf16_f32 v{vX+i}, v{XU+2*i}, v{XU+2*i+1}')
        a(f'buffer_store_dwordx4 {V(vX+4*e,4)}, v{vXO}, s[20:23], s53 offen offset:{384*e}')
    a.label('K2_END')
    a('s_endpgm')
    a.tag = 'k2 fb'
    a.label('K2_FALLBACK')
    a.forcewait(); a.fence()
    a(f'v_and_b32 v{T}, 31, v{vL}')
    a(f'v_lshrrev_b32 v{T+1}, 5, v{vL}')
    a(f'v_lshlrev_b32 v{T+2}, 4, v{T+1}')
    a(f'v_lshl_add_u32 v{vKO}, v{T}, 5, v{T+2}')
    a(f'v_and_b32 v{T+6}, 9, v{T}')
    a(f'v_bfe_u32 v{T+7}, v{T}, 1, 1')
    a(f'v_lshl_add_u32 v{T+6}, v{T+7}, 2, v{T+6}')
    a(f'v_bfe_u32 v{T+7}, v{T}, 2, 1')
    a(f'v_lshl_add_u32 v{T+6}, v{T+7}, 1, v{T+6}')
    a(f'v_add_u32 v{T+7}, 16, v{T+7}')
    a(f'v_and_b32 v{T+8}, 1, v{T}')
    a(f'v_cmp_eq_u32 vcc, 1, v{T+8}')
    a(f'v_and_b32 v{T+9}, 26, v{T}')
    a(f'v_cndmask_b32 v{T+7}, v{T+7}, 18, vcc')
    a(f'v_cmp_gt_u32 vcc, 16, v{T}')
    a(f'v_cndmask_b32 v{T+6}, v{T+7}, v{T+6}, vcc')
    a(f'v_lshl_add_u32 v{T+6}, v{T+6}, 5, v{T+2}')
    a(f'v_cmp_lt_u32 vcc, 16, v{T+9}')
    a(f'v_mov_b32 v{T+8}, {OOB}')
    a(f'v_cndmask_b32 v{vVO}, v{T+6}, v{T+8}, vcc')
    for p in range(8):
        for l in ldk(p): a(l)
    a(f's_lshl_b32 s53, s{sW}, 8')
    a(f'v_lshl_add_u32 v{T+10}, v{vL}, 2, s53')
    a('s_mov_b32 s54, s36')
    a('s_mov_b32 s55, 0')
    a.forcewait()
    a.label('K2_FB_LOOP')
    a(f'buffer_load_dwordx4 {V(vO,4)}, v{vQO}, s[20:23], s54 offen')
    a(f'buffer_load_dword v{vO+4}, v187, s[20:23], s54 offen offset:32')
    a(f'v_mov_b32 v{vO+5}, 0')
    a(f'v_mov_b32 v{T}, 0xff800000')
    for p in range(8):
        a(f'v_mfma_f32_32x32x4bf16_1k {V(vS,32)}, {A(aKR+2*p,2)}, {V(vO+4,2)}, 0')
        for h in range(2): a(f'v_mfma_f32_32x32x16_bf16 {V(vS+16*h,16)}, {A(aKM+8*p+4*h,4)}, {V(vO,4)}, {V(vS+16*h,16)}')
        for i in range(16): a(f'v_max3_f32 v{T}, v{vS+2*i}, v{vS+2*i+1}, v{T}')
    a(f'v_mov_b32 v{T+1}, v{T}')
    a(f'v_permlane32_swap_b32 v{T+1}, v{T}')
    a(f'v_max_f32 v{T}, v{T}, v{T+1}')
    a(f'ds_write_b32 v{T+10}, v{T} offset:{L_MX}')
    a(f'v_add_u32 v{T+10}, 1024, v{T+10}')
    a('s_add_u32 s54, s54, 144')
    a('s_add_u32 s55, s55, 1')
    a.forcewait()
    a('s_cmp_lt_u32 s55, 8')
    a('s_cbranch_scc1 K2_FB_LOOP')
    a('s_barrier')
    a(f'v_lshlrev_b32 v{T+10}, 2, v{vL}')
    for t in range(8):
        for w in range(4): a(f'ds_read_b32 v{T+w}, v{T+10} offset:{L_MX+1024*t+256*w}')
        a(f'v_max3_f32 v{T}, v{T}, v{T+1}, v{T+2}')
        a(f'v_max_f32 v{T}, v{T}, v{T+3}')
        a(f'v_and_b32 v{T+1}, 0xffff0000, v{T}')
        a(f'v_sub_f32 v{T+2}, v{T}, v{T+1}')
        a(f'v_cvt_pk_bf16_f32 v{T+1}, -v{T+1}, -v{T+2}')
        a(f'v_accvgpr_write_b32 a{aQR+2*t+1}, v{T+1}')
    a(f's_mov_b32 s{sMODE}, 1')
    a.forcewait(); a.fence()
    a('s_barrier')
    a('s_branch K2_START')
    return a, dict(name='k2_kernel', nv=512, acc=256, lds=K2_LDS, grid=256, block=256)
```

```python
from common import *
L_HN = 0
L_H = 73728
K3_LDS = 147456
def gen_k3(opt):
    a = Asm(); a.tag = 'k3'
    RING = opt.get('ring', 24)
    vACC = 0
    vB = 64
    vR = 96
    vG = 96 + 4 * RING
    vPK = vG + 8
    vL, vL16, vHO, vHW, vHW8, vPO, vLH, vLH2 = range(vPK + 8, vPK + 16)
    T = vG
    sW = 32
    def B(ks, tt):
        i = 4 * ks + tt
        return A(4 * i, 4) if i < 64 else V(vB + 4 * (i - 64), 4)
    a('s_cmp_ge_u32 s2, 256')
    a('s_cbranch_scc1 K3_END')
    a('s_load_dwordx2 s[14:15], s[0:1], 88')
    a(f'v_lshrrev_b32 v{T}, 6, v0')
    a(f'v_and_b32 v{vL}, 63, v0')
    a(f'v_readfirstlane_b32 s{sW}, v{T}')
    a(f'v_lshlrev_b32 v{vL16}, 4, v{vL}')
    a(f'v_and_b32 v{T}, 12, v{vL}')
    a(f'v_and_b32 v{T+1}, 15, v{vL}')
    a(f'v_add_u32 v{T}, v{T}, v{T+1}')
    a(f'v_mul_u32_u24 v{T}, 1152, v{T}')
    a(f'v_and_b32 v{T+1}, 48, v{vL}')
    a(f'v_add_u32 v{vHO}, v{T}, v{T+1}')
    a('s_lshr_b32 s33, s2, 3')
    a('s_and_b32 s34, s2, 7')
    a('s_lshl_b32 s35, s33, 6')
    a(f's_lshr_b32 s36, s{sW}, 1')
    a('s_lshl_b32 s36, s36, 5')
    a('s_add_u32 s35, s35, s36')
    a(f's_and_b32 s36, s{sW}, 1')
    a('s_lshl_b32 s36, s36, 2')
    a('s_add_u32 s35, s35, s36')
    a('s_mul_i32 s35, s35, 1152')
    a(f's_add_u32 s35, s35, {WS_HN}')
    a('s_lshl_b32 s36, s34, 2')
    a(f's_add_u32 s36, s36, s{sW}')
    a(f's_mul_i32 s36, s36, {WSTREAM}')
    a(f's_add_u32 s36, s36, {WS_W}')
    a(f's_lshl_b32 s37, s{sW}, 10')
    a.waitall()
    srd(a, 20, 14, WS_SIZE)
    nld = 0
    wid = {}
    def wload():
        nonlocal nld
        if nld >= 486: return False
        if nld % 4 == 0 and nld: a('s_add_u32 s36, s36, 4096')
        wid[nld] = a(f'buffer_load_dwordx4 {V(vR+4*(nld%RING),4)}, v{vL16}, s[20:23], s36 offen offset:{1024*(nld%4)}')
        nld += 1
        return True
    hid = {}
    def hload(ks):
        a(f's_add_u32 m0, s37, {L_HN + 4096*ks - 64*ks}')
        a('s_nop 0')
        hid[ks] = a(f'buffer_load_dwordx4 v{vHO}, s[20:23], s35 offen offset:{64*ks} lds')
    st0 = opt.get('k3_st', [4, 10, 18])
    for ks in range(st0[0]): hload(ks)
    for _ in range(8): wload()
    for ks in range(st0[0], st0[1]): hload(ks)
    for _ in range(8): wload()
    for ks in range(st0[1], 18): hload(ks)
    while nld < RING - 1: wload()
    a(f's_lshl_b32 s38, s{sW}, 14')
    a(f's_add_u32 s38, s38, {L_H}')
    a(f'v_add_u32 v{vHW}, s38, v{vL16}')
    a(f's_lshr_b32 s38, s{sW}, 1')
    a('s_lshl_b32 s38, s38, 12')
    a(f's_and_b32 s39, s{sW}, 1')
    a('s_lshl_b32 s39, s39, 3')
    a('s_add_u32 s38, s38, s39')
    a(f's_add_u32 s38, s38, {L_H + 65536}')
    a(f'v_add_u32 v{vHW8}, s38, v{vL16}')
    a(f'v_add_u32 v{vLH}, 65536, v{vL16}')
    a(f'v_add_u32 v{vLH2}, 131072, v{vL16}')
    a(f'v_bfe_u32 v{T}, v{vL}, 2, 2')
    a(f'v_mul_u32_u24 v{T}, 73728, v{T}')
    a(f'v_lshrrev_b32 v{T+1}, 4, v{vL}')
    a(f'v_lshl_add_u32 v{T}, v{T+1}, 6, v{T}')
    a(f'v_and_b32 v{T+1}, 3, v{vL}')
    a(f'v_lshl_add_u32 v{vPO}, v{T+1}, 4, v{T}')
    a(f's_mul_i32 s40, s33, {8*73728}')
    a('s_lshl_b32 s41, s34, 8')
    a('s_add_u32 s40, s40, s41')
    a(f's_mul_i32 s41, s{sW}, {9*2048}')
    a('s_add_u32 s40, s40, s41')
    a(f's_add_u32 s40, s40, {WS_P}')
    a(f's_mov_b32 s42, {fbits(-GELU_C)}')
    def ldsrd(dst, addr):
        base = (vL16, vLH, vLH2)[addr >> 16]
        return f'ds_read_b128 {dst}, v{base} offset:{addr & 65535}'
    content = {}
    def brd(img, ks):
        def one(tt):
            content[(ks, tt)] = img
            a(ldsrd(B(ks, tt), img + 4096 * ks + 1024 * tt))
        return [(lambda tt=tt: one(tt)) for tt in range(4)]
    def gelu(ft):
        buf = vACC + 32 * (ft % 2); C = []
        for tt in range(4):
            g = buf + 4 * tt; u = buf + 16 + 4 * tt; t = T + 4 * (tt % 2)
            for h in range(2):
                C.append([f'v_fma_f32 v{t+2*h+i}, -v{g+2*h+i}, v{g+2*h+i}, s42' for i in range(2)])
                C.append([f'v_mul_f32 v{t+2*h+i}, v{t+2*h+i}, v{g+2*h+i}' for i in range(2)])
            for i in range(4): C.append([f'v_exp_f32 v{t+i}, v{t+i}'])
            for h in range(2): C.append([f'v_add_f32 v{t+2*h+i}, 1.0, v{t+2*h+i}' for i in range(2)])
            for i in range(4): C.append([f'v_rcp_f32 v{t+i}, v{t+i}'])
            for h in range(2): C.append([f'v_mul_f32 v{g+2*h+i}, v{g+2*h+i}, v{u+2*h+i}' for i in range(2)])
            for h in range(2): C.append([f'v_mul_f32 v{t+2*h+i}, v{t+2*h+i}, v{g+2*h+i}' for i in range(2)])
            C.append([f'v_cvt_pk_bf16_f32 v{vPK+2*tt+h}, v{t+2*h}, v{t+2*h+1}' for h in range(2)])
            if ft < 8: C.append([f'ds_write_b64 v{vHW}, {V(vPK+2*tt,2)} offset:{4096*(ft//2)+1024*tt+8*(ft%2)}'])
            else: C.append([f'ds_write_b64 v{vHW8}, {V(vPK+2*tt,2)} offset:{1024*tt}'])
        return C
    def run(chunk):
        for x in chunk:
            if callable(x): x()
            else: a(x)
    ncons = 0
    def group(accs, ks, first, fill):
        nonlocal ncons
        fr = V(vR + 4 * (ncons % RING), 4)
        for tt in range(4):
            assert content[(ks, tt)] == (L_HN if ncons < 324 else L_H), (ncons, ks, tt)
            a(f'v_mfma_f32_16x16x32_bf16 {V(accs+4*tt,4)}, {fr}, {B(ks,tt)}, {0 if first else V(accs+4*tt,4)}')
            if tt == 0 and wload(): continue
            if tt == 3 and ncons + 1 in wid: a.wait(wid[ncons + 1])
            if fill: run(fill.pop(0))
        ncons += 1
    bar = lambda ids: [lambda: a.wait(*ids), 's_barrier']
    run(bar([hid[st0[0] - 1]]))
    for ks in range(2): run(brd(L_HN, ks))
    for ft in range(9):
        a.tag = f'k3 ft{ft}'
        fill = ([[]] * 3 + gelu(ft - 1)) if ft else []
        for ks in range(18):
            if ft == 0 and ks + 2 < 18:
                if ks + 2 in st0: fill.append(bar([hid[st0[st0.index(ks + 2) + 1] - 1]]))
                fill += [[x] for x in brd(L_HN, ks + 2)]
            if ft == 8 and ks == 14:
                assert not fill
                fill = [[lambda: a.waitall(vm=False), 's_barrier']] + [[x] for k in range(6) for x in brd(L_H, k)]
            for gu in range(2):
                group(vACC + 32 * (ft % 2) + 16 * gu, ks, ks == 0, fill)
        if ft < 8: assert not fill, (ft, len(fill))
    carry = fill
    def epi(dt):
        acc = vACC + 32 + 16 * (dt % 2); C = []
        for p in range(2):
            for k in range(2):
                tt = 2 * p + k
                C.append([f'v_cvt_pk_bf16_f32 v{vPK+4*p+2*k+h}, v{acc+4*tt+2*h}, v{acc+4*tt+2*h+1}' for h in range(2)])
            C.append([f's_add_u32 s41, s40, {4*73728*p + 2048*dt}', f'buffer_store_dwordx4 {V(vPK+4*p,4)}, v{vPO}, s[20:23], s41 offen'])
        return C
    for dt in range(9):
        a.tag = f'k3 dt{dt}'
        if dt == 0:
            g = gelu(8); r = [[x] for k in range(6, 16) for x in brd(L_H, k)]
            fill = list(carry)
            g = [g[i] + g[i + 1] for i in range(0, len(g), 2)]
            while g or r:
                fill.append((r.pop(0) if r else []) + (g.pop(0) if g else []))
            fill.append([lambda: a.waitall(vm=False), 's_barrier'] + brd(L_H, 16) + brd(L_H, 17))
        else:
            fill = [[]] * 3 + epi(dt - 1)
        for ks in range(18):
            if dt == 0 and ks == 16: assert not fill
            group(vACC + 32 + 16 * (dt % 2), ks, ks == 0, fill)
        assert not fill
    for c in epi(8): run(c)
    a.label('K3_END')
    a('s_endpgm')
    return a, dict(name='k3_kernel', nv=512, acc=256, lds=K3_LDS, grid=256, block=256)

def gen_k4(opt):
    a = Asm(); a.tag = 'k4'
    vP = 0; vH = 72; vD = 92; vA = 112; T = 120; vL, vL16, vO = 126, 127, 128
    sW = 32
    a('s_cmp_ge_u32 s2, 256')
    a('s_cbranch_scc1 K4_END')
    a('s_load_dwordx2 s[12:13], s[0:1], 72')
    a('s_load_dwordx2 s[14:15], s[0:1], 88')
    a(f'v_lshrrev_b32 v{T}, 6, v0')
    a(f'v_and_b32 v{vL}, 63, v0')
    a(f'v_readfirstlane_b32 s{sW}, v{T}')
    a(f'v_lshlrev_b32 v{vL16}, 4, v{vL}')
    a(f'v_bfe_u32 v{T}, v{vL}, 4, 1')
    a(f'v_and_b32 v{T+1}, 3, v{vL}')
    a(f'v_lshl_add_u32 v{T}, v{T}, 2, v{T+1}')
    a(f'v_mul_u32_u24 v{T}, 1152, v{T}')
    a(f'v_and_b32 v{T+1}, 12, v{vL}')
    a(f'v_lshl_add_u32 v{T}, v{T+1}, 1, v{T}')
    a(f'v_and_b32 v{T+1}, 32, v{vL}')
    a(f'v_add_u32 v{vO}, v{T}, v{T+1}')
    a(f'v_lshlrev_b32 v{vO+1}, 1, v{vO}')
    a(f'v_lshl_add_u32 v{vO+2}, v{T+1}, 25, v{T}')
    a('s_mul_i32 s33, s2, 73728')
    a(f's_mul_i32 s34, s{sW}, {9*2048}')
    a('s_add_u32 s33, s33, s34')
    a(f's_add_u32 s33, s33, {WS_P}')
    a(f's_mul_i32 s35, s2, {8*1152}')
    a(f's_lshl_b32 s36, s{sW}, 8')
    a('s_add_u32 s36, s36, s35')
    a(f's_lshl_b32 s37, s{sW}, 5')
    a('s_add_u32 s37, s37, s35')
    a('s_add_u32 s37, s37, 1024')
    a('s_lshl_b32 s38, s36, 1')
    a(f's_add_u32 s38, s38, {WS_H}')
    a('s_lshl_b32 s39, s37, 1')
    a(f's_add_u32 s39, s39, {WS_H}')
    a.waitall()
    srd(a, 20, 14, WS_SIZE)
    srd(a, 16, 12, 2048 * 1152)
    for i in range(18):
        if i % 4 == 0 and i: a('s_add_u32 s33, s33, 4096')
        a(f'buffer_load_dwordx4 {V(vP+4*i,4)}, v{vL16}, s[20:23], s33 offen offset:{1024*(i%4)}')
    for u in range(4): a(f'buffer_load_dwordx4 {V(vH+4*u,4)}, v{vO+1}, s[20:23], s38 offen offset:{128*u}')
    a(f'buffer_load_dwordx4 {V(vH+16,4)}, v{vO+1}, s[20:23], s39 offen')
    a(f'v_and_b32 v{T}, 1, v{vL}')
    a(f'v_lshlrev_b32 v{T}, 4, v{T}')
    a(f'v_mov_b32 v{T+1}, 0x3f80')
    a(f'v_lshlrev_b32 v{T}, v{T}, v{T+1}')
    a(f'v_bfe_u32 v{T+1}, v{vL}, 1, 3')
    for i in range(8):
        a(f'v_cmp_eq_u32 vcc, {i}, v{T+1}')
        a(f'v_cndmask_b32 v{vA+i}, 0, v{T}, vcc')
    a(f's_mov_b32 s40, {fbits(1/ALPHA**2)}')
    for i in range(18):
        dt = i // 2; d = V(vD + 4 * (dt // 2), 4)
        a(f'v_mfma_f32_16x16x32_bf16 {d}, {V(vA+4*(dt%2),4)}, {V(vP+4*i,4)}, {d if i % 4 else 0}')
    for u in range(5):
        for r in range(4): a(f'v_fmac_f32 v{vH+4*u+r}, s40, v{vD+4*u+r}')
        for h in range(2): a(f'v_cvt_pk_bf16_f32 v{vH+4*u+h}, v{vH+4*u+2*h}, v{vH+4*u+2*h+1}')
        if u < 4: a(f'buffer_store_dwordx2 {V(vH+4*u,2)}, v{vO}, s[16:19], s36 offen offset:{64*u}')
        else: a(f'buffer_store_dwordx2 {V(vH+4*u,2)}, v{vO+2}, s[16:19], s37 offen')
    a.label('K4_END')
    a('s_endpgm')
    return a, dict(name='k4_kernel', nv=136, acc=136, lds=0, grid=256, block=256)
```

```python
import sys, json
from common import *
from k1 import gen_k1
from k2 import gen_k2
from k3 import gen_k3, gen_k4
NAME = 'sequential_preLN__grouped_kv_mqa__glu_gated_geglu__prompt'
def build(opt, verbose=False):
    ks = [g(opt) for g in (gen_k1, gen_k2, gen_k3, gen_k4)]
    ref = open(f'cdna_kernels/{NAME}.s.ref').read().split('\n')
    head = [l for l in ref if l.startswith(';') and '@launch' not in l and 'Override' not in l and 'grid=ceil' not in l]
    s = '\n'.join(head) + '\n'
    for a, d in ks: s += f"; @launch kernel={d['name']} grid=({d['grid']},1,1) block=({d['block']},1,1) lds={d['lds']}\n"
    s += '.amdgcn_target "amdgcn-amd-amdhsa--gfx950"\n.text\n'
    for a, d in ks:
        s += kernel_header(d['name']) + a.text()
        print(d['name'], 'instrs', a.n, 'nops', a.nops, 'autowaits', a.autowaits, file=sys.stderr)
        if verbose:
            for l in a.log: print('   ', l, file=sys.stderr)
    s += 'CODE_END:\n.section .rodata,"a"\n'
    for a, d in ks: s += kernel_desc(d['name'], d['nv'], d['acc'])
    return s
if __name__ == '__main__':
    out = sys.argv[1] if len(sys.argv) > 1 else f'cdna_kernels/{NAME}.s'
    opt = json.loads(sys.argv[2]) if len(sys.argv) > 2 else {}
    open(out, 'w').write(build(opt, verbose='-v' in sys.argv))
```

```python
import math
from asmlib import *
WS_Q  = 0
WS_KM = 0x240000
WS_KR = WS_KM + 0x10000
WS_VT = WS_KR + 0x4000
WS_WO = 0x280000
WS_HN = 0x340000
WS_H  = 0x580000
WS_W  = 0xA00000
WS_P  = 0x1A00000
WS_FL = 0x2C00000
WS_SIZE = 0x2E00000
WSTREAM = 486 * 1024
OOB = 0x40000000
LOG2E = 1.4426950408889634
QSCALE = 18 ** -0.5 * LOG2E
K1C = 2 * math.sqrt(2 / math.pi) * LOG2E
ALPHA = (K1C * 0.044715) ** (1 / 3)
GELU_C = K1C / ALPHA
EPS = 1e-5
def srd(a, d, lo, size):
    a(f's_mov_b32 s{d}, s{lo}')
    a(f's_mov_b32 s{d+1}, s{lo+1}')
    a(f's_mov_b32 s{d+2}, {size}')
    a(f's_mov_b32 s{d+3}, 0x20000')

WS_TS = 0x2C80000
class Stamper:
    def __init__(s, a, on, vreg, kidx, sW=32):
        s.a, s.on, s.v, s.k, s.sW, s.n, s.names = a, on, vreg, kidx, sW, 0, []
    def __call__(s, name):
        if not s.on: return
        a = s.a
        a('s_memrealtime s[100:101]'); a.waitall(vm=False)
        a(f'v_writelane_b32 v{s.v}, s100, {s.n}')
        a('s_memtime s[100:101]'); a.waitall(vm=False)
        a(f'v_writelane_b32 v{s.v}, s100, {32 + s.n}')
        s.n += 1; s.names.append(name)
    def flush(s, tmp, final=True):
        if not s.on: return
        a = s.a
        if final:
            a.waitall(); s('end')
        a('s_mov_b64 exec, -1')
        a(f'v_mbcnt_lo_u32_b32 v{tmp}, -1, 0')
        a(f'v_mbcnt_hi_u32_b32 v{tmp}, -1, v{tmp}')
        a(f'v_lshlrev_b32 v{tmp}, 2, v{tmp}')
        a('s_lshl_b32 s100, s2, 2')
        a(f's_add_u32 s100, s100, s{s.sW}')
        a('s_lshl_b32 s100, s100, 8')
        a(f's_add_u32 s100, s100, {WS_TS + s.k * 0x40000}')
        a(f'buffer_store_dword v{s.v}, v{tmp}, s[20:23], s100 offen')
        a.comment('STAMPS %d %s' % (s.k, ','.join(s.names)))
```

```python
from common import *
K1_LDS = 92160 + 4096
def gen_k1(opt):
    a = Asm(); a.tag = 'k1'
    X = 0
    ACC = 72
    WF = 92
    SUM = 132
    ONE = 136
    T = 140
    vL, vXO, vP, vO4, vTA, vT4 = 150, 151, 152, 154, 155, 159
    vWoO, vNM, vVAR, vR8, vCS = 160, 161, 162, 163, 164
    vPT = 166
    sW, sRB, sCG = 32, 33, 34
    a('s_cmp_ge_u32 s2, 256')
    a('s_cbranch_scc1 K1_END')
    st = Stamper(a, opt.get('ts'), 167, 0)
    st('start')
    a('s_load_dwordx8 s[4:11], s[0:1], 0')
    a('s_load_dwordx2 s[12:13], s[0:1], 32')
    a('s_load_dwordx2 s[14:15], s[0:1], 88')
    a(f'v_lshrrev_b32 v{T}, 6, v0')
    a(f'v_and_b32 v{vL}, 63, v0')
    a(f'v_readfirstlane_b32 s{sW}, v{T}')
    if opt.get('pfcode', 1):
        a('s_getpc_b64 s[54:55]')
        a.label('K1_PC')
        a('s_lshr_b32 s3, s2, 3')
        a('s_lshl_b32 s3, s3, 2')
        a(f's_add_u32 s3, s3, s{sW}')
        a('s_cmp_ge_u32 s3, (CODE_END-K1_PC+8191)/8192')
        a('s_cbranch_scc1 K1_NOPF')
        a('s_lshl_b32 s3, s3, 13')
        a(f'v_lshl_add_u32 v{T}, v{vL}, 7, s3')
        a(f'v_min_u32 v{T}, CODE_END-K1_PC-4, v{T}')
        a.raw(f'    global_load_dword v165, v{T}, s[54:55]')
        a.label('K1_NOPF')
    a(f's_and_b32 s{sRB}, s2, 7')
    a(f's_lshl_b32 s{sRB}, s{sRB}, 2')
    a(f's_bfe_u32 s3, s2, 0x20003')
    a(f's_add_u32 s{sRB}, s{sRB}, s3')
    a(f's_lshr_b32 s{sCG}, s2, 5')
    a(f'v_and_b32 v{T}, 15, v{vL}')
    a(f'v_mul_u32_u24 v{vXO}, 1152, v{T}')
    a(f'v_and_b32 v{T+1}, 48, v{vL}')
    a(f'v_add_u32 v{vXO}, v{vXO}, v{T+1}')
    a(f's_lshl_b32 s35, s{sRB}, 2')
    a(f's_add_u32 s35, s35, s{sW}')
    a(f's_mul_i32 s36, s35, {16*1152}')
    a(f'v_lshrrev_b32 v{vR8}, 3, v{vL}')
    a(f'v_and_b32 v{T}, 6, v{vR8}')
    a(f'v_and_b32 v{vCS}, 7, v{vL}')
    a(f'v_xor_b32 v{vCS}, v{vCS}, v{T}')
    a(f'v_and_b32 v{T}, 4, v{vR8}')
    a(f'v_add_u32 v{T+2}, v{vR8}, v{T}')
    a(f's_and_b32 s37, s{sW}, 1')
    a(f's_lshl_b32 s37, s37, 4')
    a(f's_lshr_b32 s38, s{sW}, 1')
    a(f's_lshl_b32 s38, s38, 2')
    a(f's_add_u32 s37, s37, s38')
    a(f'v_add_u32 v{T+2}, s37, v{T+2}')
    a.waitall()
    st('karg')
    srd(a, 16, 4, 2048 * 1152)
    for ks in range(18):
        a(f'buffer_load_dwordx4 {V(X+4*ks,4)}, v{vXO}, s[16:19], s36 offen offset:{64*ks}')
    srd(a, 24, 6, 576 * 1152)
    a(f's_cmp_eq_u32 s{sCG}, 7')
    a('s_cbranch_scc1 K1_PKV')
    a(f'v_mul_u32_u24 v{T+3}, 1152, v{T+2}')
    a(f'v_lshl_add_u32 v{T+3}, v{vCS}, 4, v{T+3}')
    a(f's_lshl_b32 s37, s{sCG}, 7')
    a(f's_add_u32 s38, s6, s37')
    a(f's_addc_u32 s39, s7, 0')
    a(f'v_mov_b32 v{T+4}, s38')
    a(f'v_mov_b32 v{T+5}, s39')
    a(f's_mov_b32 s40, {32*1152}')
    a('s_branch K1_PDONE')
    a.label('K1_PKV')
    a(f'v_mul_u32_u24 v{T+3}, 36, v{T+2}')
    a(f'v_and_b32 v{T}, 1, v{vCS}')
    a(f'v_lshrrev_b32 v{T+1}, 1, v{vCS}')
    a(f'v_lshlrev_b32 v{T+6}, 4, v{T}')
    a(f'v_cmp_gt_u32 vcc, 4, v{vCS}')
    a(f'v_cndmask_b32 v{T+6}, 20, v{T+6}, vcc')
    a(f'v_cndmask_b32 v{T}, v{T}, v{T+1}, vcc')
    a(f'v_add_u32 v{T+3}, v{T+3}, v{T+6}')
    a(f'v_cmp_eq_u32 vcc, 1, v{T}')
    a(f'v_mov_b32 v{T+4}, s8')
    a(f'v_mov_b32 v{T+5}, s9')
    a(f'v_mov_b32 v{T+6}, s10')
    a(f'v_mov_b32 v{T+7}, s11')
    a(f'v_cndmask_b32 v{T+4}, v{T+4}, v{T+6}, vcc')
    a(f'v_cndmask_b32 v{T+5}, v{T+5}, v{T+7}, vcc')
    a(f's_mov_b32 s40, {32*36}')
    a.label('K1_PDONE')
    a(f'v_add_co_u32 v{vP}, vcc, v{T+4}, v{T+3}')
    a('s_mov_b32 s41, 0')
    a(f'v_lshrrev_b32 v{T}, 1, v{vL}')
    a(f'v_addc_co_u32 v{vP+1}, vcc, 0, v{T+5}, vcc')
    a(f'v_and_b32 v{T+1}, 12, v{T}')
    a(f'v_lshlrev_b32 v{T+1}, 1, v{T+1}')
    a(f'v_and_or_b32 v{T+1}, v{T}, 3, v{T+1}')
    a(f'v_lshrrev_b32 v{T}, 4, v{T}')
    a(f'v_lshl_add_u32 v{T+8}, v{T}, 2, v{T+1}')
    a(f'v_and_b32 v{T}, 1, v{vL}')
    a(f'v_lshlrev_b32 v{T+9}, 4, v{T}')
    a(f's_movk_i32 s47, 1152')
    a(f'v_mad_u32_u24 v{vO4}, v{T+8}, s47, v{T+9}')
    a(f's_lshl_b32 s42, s{sW}, 10')
    a(f's_lshl_b32 s43, s{sCG}, 5')
    a(f's_add_u32 s43, s43, 896')
    stage_last = {}
    for u in range(5):
        a(f's_add_u32 s44, s{sW}, {4*u}')
        if u == 4: a('s_min_u32 s44, s44, 17')
        a(f's_mul_i32 s45, s44, 5120')
        a(f's_add_u32 m0, s45, 4096')
        a(f's_mul_i32 s45, s44, {32*1152}')
        a(f's_add_u32 s45, s45, s43')
        a(f'buffer_load_dwordx4 v{vO4}, s[24:27], s45 offen lds')
        for ks in range(4*u, min(4*u+4, 18)):
            a(f's_add_u32 m0, s42, {5120*ks}')
            if ks: a(f'v_lshl_add_u64 {V(vP,2)}, {V(vP,2)}, 0, s[40:41]')
            stage_last[u] = a(f'global_load_lds_dwordx4 {V(vP,2)}, off')
    srd(a, 28, 12, 576 * 1152)
    srd(a, 20, 14, WS_SIZE)
    a('s_min_u32 s44, s2, 161')
    a('s_mul_i32 s45, s44, 57')
    a('s_lshr_b32 s45, s45, 9')
    assert all((u * 57) >> 9 == u // 9 for u in range(162))
    a('s_mul_i32 s46, s45, 9')
    a('s_sub_u32 s46, s44, s46')
    a('s_lshl_b32 s46, s46, 2')
    a(f's_add_u32 s46, s46, s{sW}')
    a('s_lshl_b32 s48, s45, 5')
    a(f'v_add_u32 v{T}, s48, v{T+8}')
    a(f'v_lshrrev_b32 v{T+1}, 4, v{T}')
    a(f'v_lshl_add_u32 v{T+1}, v{T+1}, 1, v{T}')
    a(f'v_and_b32 v{T+2}, 60, v{T}')
    a(f'v_lshrrev_b32 v{T+2}, 1, v{T+2}')
    a(f'v_and_or_b32 v{T+2}, v{T}, 1, v{T+2}')
    a(f'v_bfe_u32 v{T+3}, v{T}, 1, 1')
    a(f'v_mad_u32_u24 v{T+2}, v{T+2}, 18, v{T+3}')
    a(f'v_add_u32 v{T+2}, 16, v{T+2}')
    a(f'v_cmp_gt_u32 vcc, 512, v{T}')
    a(f'v_cndmask_b32 v{T+1}, v{T+2}, v{T+1}, vcc')
    a(f'v_mad_u32_u24 v{vWoO}, v{T+1}, s47, v{T+9}')
    a('s_lshl_b32 s48, s46, 5')
    a('s_add_u32 m0, s42, 92160')
    a('s_mul_i32 s49, s46, 57')
    wo_ld = a(f'buffer_load_dwordx4 v{vWoO}, s[28:31], s48 offen lds')
    a('s_lshr_b32 s49, s49, 9')
    a('s_mul_i32 s50, s49, 72')
    a('s_add_u32 s50, s50, s46')
    a('s_lshr_b32 s51, s45, 1')
    a('s_mul_i32 s51, s51, 9')
    a('s_add_u32 s50, s50, s51')
    a('s_lshl_b32 s50, s50, 1')
    a('s_and_b32 s51, s45, 1')
    a('s_add_u32 s50, s50, s51')
    a('s_lshl_b32 s50, s50, 10')
    a(f's_add_u32 s50, s50, {WS_WO}')
    a(f'v_bfe_u32 v{T}, v{vL}, 2, 3')
    a(f'v_lshrrev_b32 v{T+1}, 5, v{vL}')
    a(f'v_lshlrev_b32 v{T+1}, 10, v{T+1}')
    a(f'v_lshl_add_u32 v{T+1}, v{T}, 7, v{T+1}')
    a(f'v_and_b32 v{T}, 6, v{T}')
    a(f'v_lshl_add_u32 v{T+1}, v{T}, 4, v{T+1}')
    a(f'v_and_b32 v{T}, 3, v{vL}')
    a(f'v_lshl_add_u32 v{vTA}, v{T}, 3, v{T+1}')
    for t in range(1, 4): a(f'v_xor_b32 v{vTA+t}, {32*t}, v{vTA}')
    a(f'v_lshlrev_b32 v{vT4}, 3, v{vL}')
    for i in range(4): a(f'v_mov_b32 v{ONE+i}, 0x3f803f80')
    a('s_mov_b32 s52, 0x00003f80')
    a('s_mov_b32 s53, 0x3f800000')
    a(f'v_mov_b32 v{vVAR}, 0')
    st('issued')
    for ks in range(18):
        a(f'v_mfma_f32_16x16x32_bf16 {V(SUM,4)}, {V(ONE,4)}, {V(X+4*ks,4)}, {V(SUM,4) if ks else 0}')
    a(f'v_mul_f32 v{vNM}, {fbits(-1/576)}, v{SUM}')
    st('xarr')
    def dots(g):
        b = WF + 8 * (g % 2)
        for i in range(4):
            a(f'v_dot2_f32_bf16 v{b+2*i}, v{X+4*g+i}, s52, v{vNM}')
            a(f'v_dot2_f32_bf16 v{b+2*i+1}, v{X+4*g+i}, s53, v{vNM}')
    def cvts(g):
        b = WF + 8 * (g % 2)
        for i in range(4): a(f'v_cvt_pk_bf16_f32 v{X+4*g+i}, v{b+2*i}, v{b+2*i+1}')
    def sq(g):
        for i in range(4): a(f'v_dot2_f32_bf16 v{vVAR}, v{X+4*g+i}, v{X+4*g+i}, v{vVAR}')
    dots(0)
    for g in range(18):
        if g + 1 < 18: dots(g + 1)
        cvts(g); sq(g)
    st('centered')
    bars = opt.get('k1_bars', {0: 1, 8: 4})
    def reads(ks):
        if ks in bars:
            a.wait(stage_last[bars[ks]])
            a('s_barrier')
            st(f'bar{ks}')
        if ks == 9:
            for t in range(4): a(f'v_add_u32 v{vTA+t}, {9*5120}, v{vTA+t}')
            a(f'v_add_u32 v{vT4}, {9*5120}, v{vT4}')
        o = 5120 * (ks % 9); b = WF + 20 * (ks % 2)
        L = []
        for t in range(4):
            for h in range(2): L.append(f'ds_read_b64_tr_b16 {V(b+4*t+2*h,2)}, v{vTA+t} offset:{o+2048*h}')
        for h in range(2): L.append(f'ds_read_b64_tr_b16 {V(b+16+2*h,2)}, v{vT4} offset:{o+4096+512*h}')
        return L
    for l in reads(0): a(l)
    for ks in range(18):
        nxt = reads(ks + 1) if ks + 1 < 18 else []
        b = WF + 20 * (ks % 2)
        for t in range(5):
            for l in nxt[2*t:2*t+2]: a(l)
            a(f'v_mfma_f32_16x16x32_bf16 {V(ACC+4*t,4)}, {V(b+4*t,4)}, {V(X+4*ks,4)}, {V(ACC+4*t,4) if ks else 0}')
    st('gemm')
    a.wait(wo_ld)
    a(f'v_add_u32 v{T}, s42, v{vT4}')
    a(f'ds_read_b64_tr_b16 {V(WF,2)}, v{T} offset:{92160-9*5120}')
    a(f'ds_read_b64_tr_b16 {V(WF+2,2)}, v{T} offset:{92160-9*5120+512}')
    a(f'v_mov_b32 v{T+1}, v{vVAR}')
    a(f'v_lshlrev_b32 v{T+4}, 4, v{vL}')
    a(f'v_lshrrev_b32 v{T+5}, 4, v{vL}')
    a(f'v_permlane32_swap_b32 v{T+1}, v{vVAR}')
    a(f'v_add_f32 v{vVAR}, v{vVAR}, v{T+1}')
    a(f'v_mov_b32 v{T+1}, v{vVAR}')
    a(f'v_and_b32 v{T+6}, 15, v{vL}')
    a(f'v_mov_b32 v{T+2}, {fbits(EPS)}')
    a(f'v_permlane16_swap_b32 v{T+1}, v{vVAR}')
    a(f'v_add_f32 v{vVAR}, v{vVAR}, v{T+1}')
    a(f'v_fmac_f32 v{T+2}, {fbits(1/576)}, v{vVAR}')
    a(f'v_rsq_f32 v{T+2}, v{T+2}')
    a(f'buffer_store_dwordx4 {V(WF,4)}, v{T+4}, s[20:23], s50 offen')
    a(f'v_mul_f32 v{T+3}, {fbits(QSCALE)}, v{T+2}')
    a(f'v_lshlrev_b32 v{T+7}, 3, v{T+5}')
    a(f'v_mad_u32_u24 v{T+7}, v{T+6}, s47, v{T+7}')
    def scale_pack(t, sc):
        for r in range(4): a(f'v_mul_f32 v{ACC+4*t+r}, v{sc}, v{ACC+4*t+r}')
        a(f'v_cvt_pk_bf16_f32 v{ACC+4*t}, v{ACC+4*t}, v{ACC+4*t+1}')
        a(f'v_cvt_pk_bf16_f32 v{ACC+4*t+1}, v{ACC+4*t+2}, v{ACC+4*t+3}')
    scale_pack(4, T+3)
    a(f's_add_u32 s44, s36, s43')
    a(f'buffer_store_dwordx2 {V(ACC+16,2)}, v{T+7}, s[20:23], s44 offen')
    a(f's_cmp_eq_u32 s{sCG}, 7')
    a('s_cbranch_scc1 K1_EKV')
    a(f's_lshl_b32 s44, s{sCG}, 7')
    a(f's_add_u32 s44, s44, s36')
    for t in range(4):
        scale_pack(t, T+3)
        a(f'buffer_store_dwordx2 {V(ACC+4*t,2)}, v{T+7}, s[20:23], s44 offen offset:{32*t}')
    n0 = st.n
    st.flush(T)
    st.n = n0
    a('s_endpgm')
    a.label('K1_EKV')
    for t in range(3): scale_pack(t, T+2)
    a(f'v_lshlrev_b32 v{T}, 3, v{T+5}')
    a(f'v_lshl_add_u32 v{T}, v{T+6}, 5, v{T}')
    a('s_lshl_b32 s44, s35, 9')
    a(f's_add_u32 s44, s44, {WS_KM}')
    a(f'buffer_store_dwordx2 {V(ACC,2)}, v{T}, s[20:23], s44 offen')
    a(f'v_lshlrev_b32 v{T+1}, 1, v{T+6}')
    a(f'v_lshl_add_u32 v{T}, v{T+5}, 7, v{T+1}')
    a('s_mul_i32 s44, s35, 640')
    a(f's_add_u32 s44, s44, {WS_VT}')
    a(f'buffer_store_short v{ACC+4}, v{T}, s[20:23], s44 offen')
    a(f'buffer_store_short_d16_hi v{ACC+4}, v{T}, s[20:23], s44 offen offset:32')
    a(f'buffer_store_short v{ACC+5}, v{T}, s[20:23], s44 offen offset:64')
    a(f'buffer_store_short_d16_hi v{ACC+5}, v{T}, s[20:23], s44 offen offset:96')
    a(f'v_mov_b32 v{T+8}, {OOB}')
    a(f'v_cmp_eq_u32 vcc, 3, v{T+5}')
    a(f'v_mov_b32 v{ACC+10}, v{ACC+9}')
    a(f'v_mov_b32 v{ACC+11}, 0x3f803f80')
    a(f'v_cndmask_b32 v{T}, v{T+8}, v{T+1}, vcc')
    a(f'buffer_store_short v{ACC+10}, v{T}, s[20:23], s44 offen offset:512')
    a(f'buffer_store_short_d16_hi v{ACC+10}, v{T}, s[20:23], s44 offen offset:544')
    a(f'buffer_store_short v{ACC+11}, v{T}, s[20:23], s44 offen offset:576')
    a(f'v_cmp_eq_u32 vcc, 1, v{T+5}')
    a(f'v_lshlrev_b32 v{T+1}, 4, v{T+6}')
    a(f's_lshr_b32 s44, s{sRB}, 1')
    a(f'v_cndmask_b32 v{T+9}, v{T+8}, v{T+1}, vcc')
    a('s_lshl_b32 s44, s44, 10')
    a(f's_and_b32 s45, s{sRB}, 1')
    a('s_lshl_b32 s45, s45, 3')
    a('s_add_u32 s44, s44, s45')
    a(f's_lshl_b32 s45, s{sW}, 8')
    a('s_add_u32 s44, s44, s45')
    a(f's_add_u32 s44, s44, {WS_KR}')
    a(f'buffer_store_dwordx2 {V(ACC+10,2)}, v{T+9}, s[20:23], s44 offen')
    st.flush(T)
    a.label('K1_END')
    a('s_endpgm')
    return a, dict(name='k1_kernel', nv=168, acc=168, lds=K1_LDS, grid=256, block=256)
```

```python
from common import *
L_OP = 0
L_AF = 40960
L_BAD = L_AF + 9216
L_MX = L_BAD + 64
L_ST = L_MX + 8192
K2_LDS = L_ST + 65536
aKM, aV, aKR, aQM, aQR = 0, 64, 192, 208, 240
vS, vO, vWA, vAF, vF, vX = 0, 64, 96, 132, 140, 160
vL, vL16, vIDX, vIDX2, vZ, vOPW, vOPW8, vOPR, vOPR8, vQO, vKO, vVO, vXO, vSWG, vTA = 172, 173, 174, 175, 176, 178, 179, 180, 181, 182, 183, 184, 185, 186, 252
vAFW, vAFW2 = 182, 183
vRING = 188
sW, sMODE, sBAD = 32, 33, 34

class Sched:
    def __init__(s): s.d = {}
    def put(s, it, slot, *items): s.d.setdefault((it, slot), []).extend(items)
    def spread(s, it0, slots, items, per=1):
        it = it0; k = 0; items = list(items)
        while items:
            for _ in range(per):
                if items: s.put(it, slots[k], items.pop(0))
            k += 1
            if k == len(slots): k = 0; it += 1
        return it
    def run(s, a, it, slot):
        for x in s.d.pop((it, slot), []):
            if callable(x): x()
            else: a(x)

def gen_k2(opt):
    a = Asm(); a.tag = 'k2'
    T = vF
    a('s_cmp_ge_u32 s2, 256')
    a('s_cbranch_scc1 K2_END')
    st = Stamper(a, opt.get('ts'), 186, 1)
    st('start')
    a('s_load_dwordx2 s[4:5], s[0:1], 0')
    a('s_load_dwordx2 s[14:15], s[0:1], 88')
    a('s_load_dwordx4 s[8:11], s[0:1], 48')
    a('s_load_dwordx2 s[12:13], s[0:1], 64')
    a(f'v_lshrrev_b32 v{T}, 6, v0')
    a(f'v_and_b32 v{vL}, 63, v0')
    a(f'v_readfirstlane_b32 s{sW}, v{T}')
    a(f's_mov_b32 s{sMODE}, 0')
    a(f'v_lshlrev_b32 v{vL16}, 4, v{vL}')
    a(f'v_and_b32 v{T}, 31, v{vL}')
    a(f'v_lshrrev_b32 v{T+1}, 5, v{vL}')
    a(f'v_lshlrev_b32 v{T+2}, 4, v{T+1}')
    a(f'v_lshl_add_u32 v{vKO}, v{T}, 5, v{T+2}')
    a(f'v_and_b32 v{T+3}, 7, v{vL}')
    a(f'v_bfe_u32 v{T+4}, v{vL}, 3, 2')
    a(f'v_mul_u32_u24 v{T+5}, 1152, v{T+3}')
    a(f'v_mad_u32_u24 v{T+5}, v{T+4}, 36, v{T+5}')
    a(f'v_add_u32 v{vQO}, v{T+5}, v{T+2}')
    a(f'v_mov_b32 v187, v{T+5}')
    a(f'v_and_b32 v{T+6}, 9, v{T}')
    a(f'v_bfe_u32 v{T+7}, v{T}, 1, 1')
    a(f'v_lshl_add_u32 v{T+6}, v{T+7}, 2, v{T+6}')
    a(f'v_bfe_u32 v{T+7}, v{T}, 2, 1')
    a(f'v_lshl_add_u32 v{T+6}, v{T+7}, 1, v{T+6}')
    a(f'v_add_u32 v{T+7}, 16, v{T+7}')
    a(f'v_and_b32 v{T+8}, 1, v{T}')
    a(f'v_cmp_eq_u32 vcc, 1, v{T+8}')
    a(f'v_and_b32 v{T+9}, 26, v{T}')
    a(f's_mul_i32 s36, s2, {8*1152}')
    a(f'v_cndmask_b32 v{T+7}, v{T+7}, 18, vcc')
    a(f'v_cmp_gt_u32 vcc, 16, v{T}')
    a(f's_lshl_b32 s37, s{sW}, 14')
    a(f's_add_u32 s37, s37, {WS_KM}')
    a(f'v_cndmask_b32 v{T+6}, v{T+7}, v{T+6}, vcc')
    a(f'v_lshl_add_u32 v{T+6}, v{T+6}, 5, v{T+2}')
    a(f'v_cmp_lt_u32 vcc, 16, v{T+9}')
    a(f'v_mov_b32 v{T+8}, {OOB}')
    a(f's_lshl_b32 s38, s{sW}, 12')
    a(f'v_cndmask_b32 v{vVO}, v{T+6}, v{T+8}, vcc')
    a(f's_add_u32 s38, s38, {WS_KR}')
    a(f's_mul_i32 s39, s{sW}, {32*640}')
    a(f's_add_u32 s39, s39, {WS_VT}')
    for t in range(8): a(f'v_accvgpr_write_b32 a{aQR+2*t+1}, 0')
    a.waitall()
    srd(a, 20, 14, WS_SIZE)
    st('karg')
    a.label('K2_START')
    def ldq(t):
        return [f'buffer_load_dwordx4 {A(aQM+4*t,4)}, v{vQO}, s[20:23], s36 offen offset:{144*t}',
                f'buffer_load_dword a{aQR+2*t}, v187, s[20:23], s36 offen offset:{144*t+32}']
    def ldk(p):
        L = []
        if p % 2 == 0:
            L += [f's_add_u32 s40, s37, {2048*p}',
                  f'buffer_load_dwordx4 {A(aKR+2*p,4)}, v{vL16}, s[20:23], s38 offen offset:{512*p}']
        L += [f'buffer_load_dwordx4 {A(aKM+8*p+4*t,4)}, v{vKO}, s[20:23], s40 offen offset:{2048*(p%2)+1024*t}' for t in range(2)]
        return L
    def ldv(p):
        return [f's_add_u32 s41, s39, {2560*p}'] + [f'buffer_load_dwordx4 {A(aV+16*p+4*g,4)}, v{vVO}, s[20:23], s41 offen offset:{640*g}' for g in range(4)]
    for l in ldq(0) + ldk(0): a(l)
    for p in range(8):
        if p + 1 < 8:
            for l in ldk(p + 1): a(l)
        for l in ldv(p): a(l)
    for l in ldq(1): a(l)
    a(f's_mov_b64 s[{sBAD}:{sBAD+1}], 0')
    a(f'v_mov_b32 v{vIDX}, 0xdddddddd')
    a(f'v_mov_b32 v{vZ}, 0')
    a(f'v_mov_b32 v{vZ+1}, 0')
    a(f'v_and_b32 v{T}, 1, v{vL}')
    a(f'v_mul_u32_u24 v{vIDX2}, 0xaaaa, v{T}')
    a(f'v_add_u32 v{vIDX2}, 0x4444, v{vIDX2}')
    for i in range(36): a(f'v_mov_b32 v{vWA+i}, 0')
    for i in range(32): a(f'v_mov_b32 v{vO+i}, 0')
    a(f's_mul_i32 s42, s{sW}, 2560')
    a(f's_mul_i32 s43, s{sW}, 10240')
    a(f'v_add_u32 v{vOPW}, s42, v{vL16}')
    a(f'v_lshl_add_u32 v{vOPW8}, v{vL}, 3, s42')
    a(f'v_add_u32 v{vOPR}, s43, v{vL16}')
    a(f'v_lshl_add_u32 v{vOPR8}, v{vL}, 3, s43')
    srd(a, 16, 4, 2048 * 1152)
    a(f'v_and_b32 v{T}, 31, v{vL}')
    a(f'v_lshrrev_b32 v{T+1}, 5, v{vL}')
    a(f'v_lshlrev_b32 v{T}, 4, v{T}')
    a(f's_movk_i32 s44, 1152')
    a(f'v_mad_u32_u24 v{vXO}, v{T+1}, s44, v{T}')
    a(f's_mul_i32 s45, s{sW}, 2304')
    a(f's_add_u32 s45, s45, s36')
    a(f's_mul_i32 s46, s{sW}, {81*2048}')
    a(f's_add_u32 s46, s46, {WS_WO}')
    a(f'v_lshrrev_b32 v{T}, 3, v{vL}')
    a(f'v_and_b32 v{T+1}, 6, v{T}')
    a(f'v_and_b32 v{T+2}, 7, v{vL}')
    a(f'v_xor_b32 v{T+2}, v{T+2}, v{T+1}')
    a(f'v_lshlrev_b32 v{T+2}, 4, v{T+2}')
    vSD, vSG, vSX = vRING + 60, vRING + 61, vRING + 62
    a(f'v_mad_u32_u24 v{vSD}, v{T}, s44, v{T+2}')
    a(f'v_and_b32 v{T+1}, 4, v{T}')
    a(f'v_add_u32 v{T}, v{T}, v{T+1}')
    a(f's_movk_i32 s44, 9216')
    a(f'v_mad_u32_u24 v{vSG}, v{T}, s44, v{T+2}')
    a(f's_lshl_b32 s47, s{sW}, 14')
    a(f's_add_u32 s47, s47, {L_ST}')
    a(f'v_bfe_u32 v{T}, v{vL}, 2, 3')
    a(f'v_lshrrev_b32 v{T+1}, 5, v{vL}')
    a(f'v_lshlrev_b32 v{T+1}, 10, v{T+1}')
    a(f'v_lshl_add_u32 v{T+1}, v{T}, 7, v{T+1}')
    a(f'v_and_b32 v{T}, 6, v{T}')
    a(f'v_lshl_add_u32 v{T+1}, v{T}, 4, v{T+1}')
    a(f'v_and_b32 v{T}, 3, v{vL}')
    a(f'v_lshl_add_u32 v{T+1}, v{T}, 3, v{T+1}')
    for t in range(4):
        a(f'v_xor_b32 v{vTA+t}, {32*t}, v{T+1}')
        a(f'v_add_u32 v{vTA+t}, s47, v{vTA+t}')
    a('s_and_b32 s48, s2, 7')
    a('s_lshr_b32 s49, s2, 3')
    a('s_lshl_b32 s49, s49, 2')
    a(f's_add_u32 s49, s49, s{sW}')
    a('s_mul_i32 s50, s48, 1152')
    a(f's_mul_i32 s51, s48, {576*1152}')
    a(f's_mul_i32 s52, s48, {4*WSTREAM}')
    a(f's_add_u32 s52, s52, {WS_W}')
    assert all((u * 57) >> 9 == u // 9 for u in range(162))
    for u in range(4):
        a(f's_add_u32 s53, s49, {128*u}')
        a('s_min_u32 s53, s53, 485')
        a('s_cmp_ge_u32 s53, 162')
        a(f's_cselect_b32 s{64+4*u}, s10, s8')
        a(f's_cselect_b32 s{65+4*u}, s11, s9')
        a('s_cselect_b32 s54, 162, 0')
        a('s_cselect_b32 s55, 1024, 0')
        a('s_cmp_ge_u32 s53, 324')
        a(f's_cselect_b32 s{64+4*u}, s12, s{64+4*u}')
        a(f's_cselect_b32 s{65+4*u}, s13, s{65+4*u}')
        a('s_cselect_b32 s54, 324, s54')
        a(f's_cselect_b32 s55, {324*1024}, s55')
        a(f's_cselect_b32 s{84+u}, {8*1152}, s44')
        a(f's_cselect_b32 s56, s51, s50')
        a(f's_cselect_b32 s57, 10, 11')
        a(f's_cselect_b64 vcc, -1, 0')
        a(f's_mov_b32 s{66+4*u}, {576*4608*2}')
        a(f's_mov_b32 s{67+4*u}, 0x20000')
        if u == 2: a(f'v_cndmask_b32 v{vSX}, v{vSG}, v{vSD}, vcc')
        a(f's_mov_b32 s58, {16*9216}')
        a(f's_cselect_b32 s{84+u}, {8*1152}, s58')
        a(f's_mov_b32 s58, {4*9216}')
        a(f's_cselect_b32 s{88+u}, {16*1152}, s58')
        a(f's_mov_b32 s58, {32*9216}')
        a(f's_cselect_b32 s58, {32*1152}, s58')
        a(f's_mov_b32 s59, 36864')
        a(f's_cselect_b32 s59, 18432, s59')
        a('s_sub_u32 s53, s53, s54')
        a('s_mul_i32 s60, s53, 57')
        a('s_lshr_b32 s60, s60, 9')
        a('s_mul_i32 s61, s60, 9')
        a('s_sub_u32 s61, s53, s61')
        a('s_mul_i32 s58, s58, s60')
        a('s_add_u32 s58, s58, s56')
        a('s_lshl_b32 s62, s61, 7')
        a(f's_add_u32 s{80+u}, s58, s62')
        a('s_lshl_b32 s60, s60, s57')
        a('s_add_u32 s60, s60, s55')
        a('s_add_u32 s60, s60, s52')
        a('s_lshr_b32 s62, s61, 1')
        a(f's_mul_i32 s62, s62, {WSTREAM}')
        a('s_and_b32 s63, s61, 1')
        a('s_lshl_b32 s63, s63, 2')
        a('s_cmp_eq_u32 s61, 8')
        a('s_cselect_b32 s62, 0, s62')
        a('s_cselect_b32 s63, 8, s63')
        a(f's_cselect_b32 s{96+u}, {WSTREAM}, s59')
        a('s_mul_i32 s63, s63, s59')
        a('s_add_u32 s60, s60, s62')
        a(f's_add_u32 s{92+u}, s60, s63')
    swv = [vSG, vSG, vSX, vSD]
    sc = Sched()
    MEM = ['P3', 'P0', 'P1', 'P2']
    ALL = ['P3', 'R', 'P0', 'P1', 'M0', 'M1', 'P2']
    ids = {}
    def rec(key, text): return lambda: ids.__setitem__(key, a(text))
    sc.spread(5, MEM, sum([ldq(t) for t in range(2, 8)], []))
    sc.spread(8, MEM, [f'buffer_load_dwordx4 {V(vX+4*e,4)}, v{vXO}, s[16:19], s45 offen offset:{384*e}' for e in range(3)])
    it = 9
    for u in range(4):
        for i in range(4):
            pre = {0: [f's_mov_b32 s53, s{80+u}'], 1: [f's_add_u32 s53, s{80+u}, s{84+u}'], 2: [f's_add_u32 s53, s{80+u}, s{88+u}'], 3: [f's_add_u32 s53, s53, s{84+u}']}[i]
            sc.put(it, MEM[i], f's_add_u32 m0, s47, {4096*u+1024*i}', *pre,
                   rec(('dma', u, i), f'buffer_load_dwordx4 v{swv[u]}, s[{64+4*u}:{67+4*u}], s53 offen lds'))
        it += 1
    it = opt.get('swz_start', 20)
    for u in range(4):
        tb = vRING + 16 * (u % 2)
        sc.put(it, 'P3', lambda u=u: a.wait(ids[('dma', u, 3)]))
        sc.spread(it, ALL + ['X1'], [f'ds_read_b64_tr_b16 {V(tb+4*t+2*h,2)}, v{vTA+t} offset:{4096*u+2048*h}' for t in range(4) for h in range(2)])
        for t in range(4):
            sc.put(it + 1, MEM[t], f's_mov_b32 s53, s{92+u}' if t == 0 else f's_add_u32 s53, s53, s{96+u}',
                   f'buffer_store_dwordx4 {V(tb+4*t,4)}, v{vL16}, s[20:23], s53 offen')
        it += 2
    def opw(t):
        o = vO + 16 * (t % 2); off = (t % 4) * 10240
        return [f'ds_write_b128 v{vOPW}, {V(o,4)} offset:{off}', f'ds_write_b128 v{vOPW}, {V(o+4,4)} offset:{off+1024}',
                f'ds_write_b64 v{vOPW8}, {V(o+8,2)} offset:{off+2048}']
    for t in range(7):
        sc.spread(8 * (t + 1), ['P0', 'P1', 'P2'], opw(t))
        if t < 6:
            o = vO + 16 * (t % 2)
            sc.put(8 * (t + 1) + 2, 'P2', lambda: a.waitall(vm=False))
            sc.put(8 * (t + 1) + 2, 'X1', f'v_mfma_f32_32x32x8bf16_1k {V(o,16)}, {V(vZ,2)}, {V(vZ,2)}, 0')
    def fin_items(half):
        L = []
        rd = lambda s, b: [f'ds_read_b128 {V(b,4)}, v{vOPR} offset:{2560*s}', f'ds_read_b128 {V(b+4,4)}, v{vOPR} offset:{2560*s+1024}',
                           f'ds_read_b64 {V(b+8,2)}, v{vOPR8} offset:{2560*s+2048}']
        F, G = vF, vF + 10
        L += rd(0, F) + rd(1, G)
        for s in range(1, 4):
            for c, (lo, n) in enumerate(((0, 4), (4, 4), (8, 2))):
                L += [f'v_add_f32 v{F+i}, v{F+i}, v{G+i}' for i in range(lo, lo + n)]
                if s < 3: L.append(rd(s + 1, G)[c])
        L += [f'v_rcp_f32 v{G}, v{F+9}',
              f'v_subrev_u32 v{G+1}, 0x33800000, v{F+9}',
              f'v_cmp_le_u32 vcc, 0x20000000, v{G+1}']
        L += [f'v_mul_f32 v{F+i}, v{G}, v{F+i}' for i in range(9)]
        L += [f's_or_b64 s[{sBAD}:{sBAD+1}], s[{sBAD}:{sBAD+1}], vcc']
        L += [f'v_cvt_pk_bf16_f32 v{F+i}, v{F+2*i}, v{F+2*i+1}' for i in range(4)]
        L += [f'v_cvt_pk_bf16_f32 v{F+8}, v{F+8}, v{F+8}']
        L += [f'ds_write_b128 v{vKO}, {V(F,4)} offset:{L_AF+4096*half}', f'ds_write_b16 v{vVO}, v{F+8} offset:{L_AF+8192+512*half}']
        return L
    afw = [f'v_and_b32 v{T}, 7, v{vL}', f'v_lshrrev_b32 v{T+1}, 5, v{vL}', f'v_lshl_add_u32 v{T}, v{T}, 1, v{T+1}',
           f'v_bfe_u32 v{T+1}, v{vL}, 3, 2', f'v_lshlrev_b32 v{T}, 4, v{T}',
           f's_lshl_b32 s53, s{sW}, 10', f'v_lshl_add_u32 v{vOPW8+0}, v{vL}, 3, s42',
           f'v_lshl_add_u32 v{T+2}, v{T+1}, 8, v{T}', f'v_add_u32 v{vKO}, s53, v{T+2}',
           f's_lshr_b32 s53, s{sW}, 1', 's_lshl_b32 s53, s53, 8', f's_and_b32 s54, s{sW}, 1', 's_lshl_b32 s54, s54, 3', 's_add_u32 s53, s53, s54',
           f'v_lshl_add_u32 v{T+2}, v{T+1}, 1, v{T}', f'v_add_u32 v{vVO}, s53, v{T+2}']
    afw.pop(6)
    sc.spread(16, ALL, afw)
    sc.put(33, 'P3', lambda: a.waitall(vm=False), 's_barrier')
    last = sc.spread(33, ['P0', 'P1', 'M0', 'M1', 'P2', 'X2'], fin_items(0), per=2)
    assert last <= 39, last
    sc.put(39, 'X2', lambda: a.waitall(vm=False), 's_barrier')
    blkreg = {}
    def wo_ld(b, reg, f):
        blkreg[b] = V(reg, 8, f)
        L = []
        L.append(f's_add_u32 s53, s46, {2048*b}')
        return [[L[0], f'buffer_load_dwordx4 {V(reg,4,f)}, v{vL16}, s[20:23], s53 offen'],
                [f'buffer_load_dwordx4 {V(reg+4,4,f)}, v{vL16}, s[20:23], s53 offen offset:1024']]
    def wo_mm(b):
        t, dt = divmod(b, 9)
        return f'v_smfmac_f32_16x16x64_bf16 {V(vWA+4*dt,4)}, {V(vAF+4*(t%2),4)}, {blkreg[b]}, v{vIDX2}'
    def af_rd(t): return f'ds_read_b128 {V(vAF+4*(t%2),4)}, v{vL16} offset:{L_AF+1024*t}'
    LS = ['P3', 'R', 'P0', 'P1', 'M0', 'P2']
    order = ['P3', 'R', 'P0', 'X0', 'P1', 'M0', 'M1', 'P2', 'X1', 'X2']
    free = [(vRING + 8 * i, 'v', (30, 0)) for i in range(8)]
    free += [(aQM, 'a', (32, 0)), (aQM + 8, 'a', (32, 0))]
    later = [(aQM + 16, 'a', (48, 0))]
    for p in range(8): later.append((aKM + 8 * p, 'a', (55 + p, 7)))
    for p in range(7):
        later += [(aV + 16 * p, 'a', (56 + p, 5)), (aV + 16 * p + 8, 'a', (57 + p, 1))]
    later.append((aV + 112, 'a', (63, 5)))
    mm_at = {}
    it = 40; XS = ['X0', 'X1', 'X2']
    k = 1
    for b in range(36):
        mm_at[b] = (it, XS[k]); k += 1
        if k == 3 or (k == 2 and it % 2 == 1): k = 0; it += 1
    assert it <= 56, it
    nb = 0; pend = []
    pool = free + later
    for it in range(34, 64):
        for si, sl in enumerate(order):
            for b, (i2, s2) in mm_at.items():
                if (i2, s2) == (it, sl):
                    assert b in blkreg, b
                    reg = int(re.findall(r'\d+', blkreg[b])[0])
                    pool.append((reg, blkreg[b][0], (it, si + 1)))
                    if b % 9 == 0 and b > 0: pass
                    sc.put(it, sl, lambda b=b: a(wo_mm(b)))
            if sl in LS:
                if not pend and nb < 81:
                    av = [x for x in pool if x[2] <= (it, si)]
                    if av:
                        x = av[0]; pool.remove(x); pend = wo_ld(nb, x[0], x[1]); nb += 1
                if pend: sc.put(it, sl, *pend.pop(0))
    sc.put(40, 'P3', af_rd(0))
    for t in range(1, 4):
        i2, s2 = mm_at[9 * (t - 1) + 3]
        sc.put(i2, 'M1', af_rd(t))
    def Pm(it, g):
        t, p = divmod(it, 8); buf = vS + 32 * (it % 2)
        return f'v_smfmac_f32_32x32x32_bf16 {V(vO+16*(t%2),16)}, {A(aV+16*p+4*g,4)}, {V(buf+8*g,8)}, v{vIDX}'
    def Rm(it):
        t, p = divmod(it, 8); buf = vS + 32 * (it % 2)
        return f'v_mfma_f32_32x32x4bf16_1k {V(buf,32)}, {A(aKR+2*p,2)}, {A(aQR+2*t,2)}, 0'
    def Mm(it, h):
        t, p = divmod(it, 8); buf = vS + 32 * (it % 2) + 16 * h
        return f'v_mfma_f32_32x32x16_bf16 {V(buf,16)}, {A(aKM+8*p+4*h,4)}, {A(aQM+4*t,4)}, {V(buf,16)}'
    a.tag = 'k2 pre'
    st('setup')
    a(Rm(0)); a(Mm(0, 0)); a(Mm(0, 1))
    for it in range(64):
        a.tag = f'k2 it{it}'
        if it % 8 == 0: st(f't{it//8}')
        buf = vS + 32 * (it % 2)
        e = iter(range(32))
        def E(n):
            for _ in range(n):
                i = next(e); a(f'v_exp_f32 v{buf+i}, v{buf+i}')
        nx = it + 1 < 64
        E(2)
        if it: a(Pm(it - 1, 3))
        sc.run(a, it, 'P3'); E(3)
        if nx: a(Rm(it + 1))
        sc.run(a, it, 'R'); E(8)
        a(Pm(it, 0)); sc.run(a, it, 'P0'); E(3); sc.run(a, it, 'X0'); E(2)
        a(Pm(it, 1)); sc.run(a, it, 'P1'); E(3)
        if nx: a(Mm(it + 1, 0))
        sc.run(a, it, 'M0'); E(3)
        if nx: a(Mm(it + 1, 1))
        sc.run(a, it, 'M1'); E(3)
        a(Pm(it, 2)); sc.run(a, it, 'P2'); E(3); sc.run(a, it, 'X1'); E(2); sc.run(a, it, 'X2')
    assert not sc.d, sc.d.keys()
    a.tag = 'k2 tail'
    st('loopend')
    for x in pend:
        for l in x: a(l)
    rest = [(x[0], x[1]) for x in pool] + [(vS + 8 * i, 'v') for i in range(4)] + [(aKR, 'a'), (aKR + 8, 'a'), (aQM + 24, 'a')]
    after = [(aV + 120, 'a')] + [(vS + 32 + 8 * i, 'v') for i in range(4)]
    def more(lst, n):
        nonlocal nb
        while lst and n and nb < 81:
            r, f = lst.pop(0)
            for x in wo_ld(nb, r, f):
                for l in x: a(l)
            nb += 1; n -= 1
    more(rest, 1)
    a(Pm(63, 3))
    more(rest, 4)
    for l in opw(7): a(l)
    more(rest, 99); more(after, 99)
    print('k2: Wo blocks issued before tail compute:', nb)
    a.waitall(vm=False)
    a('s_barrier')
    st('bar1')
    for l in fin_items(1): a(l)
    a(f's_cmp_lg_u64 s[{sBAD}:{sBAD+1}], 0')
    a('s_cselect_b32 s53, 1, 0')
    a(f'v_mov_b32 v{T+4}, s53')
    a(f's_lshl_b32 s54, s{sW}, 2')
    a(f'v_mov_b32 v{T+5}, s54')
    a(f'ds_write_b32 v{T+5}, v{T+4} offset:{L_BAD}')
    a.waitall(vm=False)
    a('s_barrier')
    a(f'ds_read_b128 {V(T,4)}, v{vZ} offset:{L_BAD}')
    a(af_rd(4)); a(af_rd(5))
    a(f'v_or3_b32 v{T}, v{T}, v{T+1}, v{T+2}')
    a(f'v_or_b32 v{T}, v{T}, v{T+3}')
    a(f'v_readfirstlane_b32 s53, v{T}')
    a(f's_andn2_b32 s53, s53, s{sMODE}')
    a('s_cbranch_scc1 K2_FALLBACK')
    st('fin')
    for b in range(36, 81):
        a(wo_mm(b))
        if nb < 81:
            reg = int(re.findall(r'\d+', blkreg[b])[0]); more([(reg, blkreg[b][0])], 1)
        if b % 9 == 8 and b // 9 + 2 <= 8: a(af_rd(b // 9 + 2))
    st('wo')
    a(f'v_lshrrev_b32 v{T}, 4, v{vL}')
    a(f'v_and_b32 v{T+1}, 15, v{vL}')
    a(f'v_mul_u32_u24 v{T}, {2*2336}, v{T}')
    a(f'v_lshl_add_u32 v{T}, v{T+1}, 2, v{T}')
    a(f's_mul_i32 s53, s{sW}, 576')
    a(f'v_add_u32 v{T}, s53, v{T}')
    a(f'v_add_u32 v{T+1}, 2336, v{T}')
    a(f'v_and_b32 v{T+2}, 31, v{vL}')
    a(f'v_lshrrev_b32 v{T+3}, 5, v{vL}')
    a(f'v_mul_u32_u24 v{T+3}, 2336, v{T+3}')
    a(f'v_lshl_add_u32 v{T+2}, v{T+2}, 5, v{T+3}')
    a(f's_mul_i32 s53, s{sW}, {2*2336}')
    a(f'v_add_u32 v{T+2}, s53, v{T+2}')
    for dt in range(9):
        a(f'v_add_f32 v{vWA+4*dt}, v{vWA+4*dt}, v{vWA+4*dt+1}')
        a(f'v_add_f32 v{vWA+4*dt+2}, v{vWA+4*dt+2}, v{vWA+4*dt+3}')
        if dt % 2 == 1:
            for k in range(2): a(f'ds_write2_b32 v{T+k}, v{vWA+4*dt-4+2*k}, v{vWA+4*dt+2*k} offset0:{16*dt-16} offset1:{16*dt}')
    for k in range(2): a(f'ds_write_b32 v{T+k}, v{vWA+32+2*k} offset:512')
    H = vS; XU = vS + 24; SU = T + 4
    for e in range(12):
        a(f'v_lshlrev_b32 v{XU+2*e}, 16, v{vX+e}')
        a(f'v_and_b32 v{XU+2*e+1}, 0xffff0000, v{vX+e}')
    a(f'v_mov_b32 v{SU}, 0'); a(f'v_mov_b32 v{SU+1}, 0'); a(f'v_mov_b32 v{SU+2}, 0'); a(f'v_mov_b32 v{SU+3}, 0')
    a('s_mov_b32 s54, 0x00ffffff'); a('s_mov_b32 s55, 0x00ffffff')
    a.waitall(vm=False)
    a('s_barrier')
    a('s_mov_b64 exec, s[54:55]')
    for e in range(3):
        for k in range(2): a(f'ds_read_b128 {V(H+8*e+4*k,4)}, v{T+2} offset:{768*e+16*k}')
    for i in range(12):
        a(f'v_pk_add_f32 {V(H+2*i,2)}, {V(H+2*i,2)}, {V(XU+2*i,2)}')
        a(f'v_pk_add_f32 {V(SU,2)}, {V(SU,2)}, {V(H+2*i,2)}')
    def red32(r):
        a('s_mov_b64 exec, -1')
        a(f'v_add_f32 v{r}, v{r}, v{r+1}')
        for m in ('quad_perm:[1,0,3,2]', 'quad_perm:[2,3,0,1]', 'row_half_mirror', 'row_mirror'):
            a(f'v_add_f32_dpp v{r}, v{r}, v{r} {m} row_mask:0xf bank_mask:0xf')
        a(f'v_mov_b32 v{r+1}, v{r}')
        a(f'v_permlane16_swap_b32 v{r+1}, v{r}')
        a(f'v_add_f32 v{r}, v{r}, v{r+1}')
        a('s_mov_b64 exec, s[54:55]')
    a(f'v_lshlrev_b32 v{T+3}, 1, v{vXO}')
    a('s_lshl_b32 s53, s45, 1')
    a(f's_add_u32 s53, s53, {WS_H}')
    for e in range(3):
        for k in range(2): a(f'buffer_store_dwordx4 {V(H+8*e+4*k,4)}, v{T+3}, s[20:23], s53 offen offset:{768*e+16*k}')
    red32(SU)
    a(f'v_mul_f32 v{SU}, {fbits(-1/576)}, v{SU}')
    a(f'v_mov_b32 v{SU+1}, v{SU}')
    for i in range(12):
        a(f'v_pk_add_f32 {V(XU+2*i,2)}, {V(H+2*i,2)}, {V(SU,2)}')
        a(f'v_pk_fma_f32 {V(SU+2,2)}, {V(XU+2*i,2)}, {V(XU+2*i,2)}, {V(SU+2,2)}')
    red32(SU + 2)
    a(f'v_mov_b32 v{SU}, {fbits(EPS)}')
    a(f'v_fmac_f32 v{SU}, {fbits(1/576)}, v{SU+2}')
    a(f'v_rsq_f32 v{SU}, v{SU}')
    a(f's_add_u32 s53, s45, {WS_HN}')
    a(f'v_mul_f32 v{SU}, {fbits(ALPHA)}, v{SU}')
    a(f'v_mov_b32 v{SU+1}, v{SU}')
    for e in range(3):
        for i in range(4 * e, 4 * e + 4): a(f'v_pk_mul_f32 {V(XU+2*i,2)}, {V(XU+2*i,2)}, {V(SU,2)}')
        for i in range(4 * e, 4 * e + 4): a(f'v_cvt_pk_bf16_f32 v{vX+i}, v{XU+2*i}, v{XU+2*i+1}')
        a(f'buffer_store_dwordx4 {V(vX+4*e,4)}, v{vXO}, s[20:23], s53 offen offset:{384*e}')
    st('ln')
    st.flush(T)
    a.label('K2_END')
    a('s_endpgm')
    a.tag = 'k2 fb'
    a.label('K2_FALLBACK')
    a.forcewait(); a.fence()
    a(f'v_and_b32 v{T}, 31, v{vL}')
    a(f'v_lshrrev_b32 v{T+1}, 5, v{vL}')
    a(f'v_lshlrev_b32 v{T+2}, 4, v{T+1}')
    a(f'v_lshl_add_u32 v{vKO}, v{T}, 5, v{T+2}')
    a(f'v_and_b32 v{T+6}, 9, v{T}')
    a(f'v_bfe_u32 v{T+7}, v{T}, 1, 1')
    a(f'v_lshl_add_u32 v{T+6}, v{T+7}, 2, v{T+6}')
    a(f'v_bfe_u32 v{T+7}, v{T}, 2, 1')
    a(f'v_lshl_add_u32 v{T+6}, v{T+7}, 1, v{T+6}')
    a(f'v_add_u32 v{T+7}, 16, v{T+7}')
    a(f'v_and_b32 v{T+8}, 1, v{T}')
    a(f'v_cmp_eq_u32 vcc, 1, v{T+8}')
    a(f'v_and_b32 v{T+9}, 26, v{T}')
    a(f'v_cndmask_b32 v{T+7}, v{T+7}, 18, vcc')
    a(f'v_cmp_gt_u32 vcc, 16, v{T}')
    a(f'v_cndmask_b32 v{T+6}, v{T+7}, v{T+6}, vcc')
    a(f'v_lshl_add_u32 v{T+6}, v{T+6}, 5, v{T+2}')
    a(f'v_cmp_lt_u32 vcc, 16, v{T+9}')
    a(f'v_mov_b32 v{T+8}, {OOB}')
    a(f'v_cndmask_b32 v{vVO}, v{T+6}, v{T+8}, vcc')
    for p in range(8):
        for l in ldk(p): a(l)
    a(f's_lshl_b32 s53, s{sW}, 8')
    a(f'v_lshl_add_u32 v{T+10}, v{vL}, 2, s53')
    a('s_mov_b32 s54, s36')
    a('s_mov_b32 s55, 0')
    a.forcewait()
    a.label('K2_FB_LOOP')
    a(f'buffer_load_dwordx4 {V(vO,4)}, v{vQO}, s[20:23], s54 offen')
    a(f'buffer_load_dword v{vO+4}, v187, s[20:23], s54 offen offset:32')
    a(f'v_mov_b32 v{vO+5}, 0')
    a(f'v_mov_b32 v{T}, 0xff800000')
    for p in range(8):
        a(f'v_mfma_f32_32x32x4bf16_1k {V(vS,32)}, {A(aKR+2*p,2)}, {V(vO+4,2)}, 0')
        for h in range(2): a(f'v_mfma_f32_32x32x16_bf16 {V(vS+16*h,16)}, {A(aKM+8*p+4*h,4)}, {V(vO,4)}, {V(vS+16*h,16)}')
        for i in range(16): a(f'v_max3_f32 v{T}, v{vS+2*i}, v{vS+2*i+1}, v{T}')
    a(f'v_mov_b32 v{T+1}, v{T}')
    a(f'v_permlane32_swap_b32 v{T+1}, v{T}')
    a(f'v_max_f32 v{T}, v{T}, v{T+1}')
    a(f'ds_write_b32 v{T+10}, v{T} offset:{L_MX}')
    a(f'v_add_u32 v{T+10}, 1024, v{T+10}')
    a('s_add_u32 s54, s54, 144')
    a('s_add_u32 s55, s55, 1')
    a.forcewait()
    a('s_cmp_lt_u32 s55, 8')
    a('s_cbranch_scc1 K2_FB_LOOP')
    a('s_barrier')
    a(f'v_lshlrev_b32 v{T+10}, 2, v{vL}')
    for t in range(8):
        for w in range(4): a(f'ds_read_b32 v{T+w}, v{T+10} offset:{L_MX+1024*t+256*w}')
        a(f'v_max3_f32 v{T}, v{T}, v{T+1}, v{T+2}')
        a(f'v_max_f32 v{T}, v{T}, v{T+3}')
        a(f'v_and_b32 v{T+1}, 0xffff0000, v{T}')
        a(f'v_sub_f32 v{T+2}, v{T}, v{T+1}')
        a(f'v_cvt_pk_bf16_f32 v{T+1}, -v{T+1}, -v{T+2}')
        a(f'v_accvgpr_write_b32 a{aQR+2*t+1}, v{T+1}')
    a(f's_mov_b32 s{sMODE}, 1')
    a.forcewait(); a.fence()
    a('s_barrier')
    a('s_branch K2_START')
    return a, dict(name='k2_kernel', nv=512, acc=256, lds=K2_LDS, grid=256, block=256)
```

```python
from common import *
L_HN = 0
L_H = 73728
K3_LDS = 147456
def gen_k3(opt):
    a = Asm(); a.tag = 'k3'
    RING = opt.get('ring', 24)
    vACC = 0
    vB = 64
    vR = 96
    vG = 96 + 4 * RING
    vPK = vG + 8
    vL, vL16, vHO, vHW, vHW8, vPO, vLH, vLH2 = range(vPK + 8, vPK + 16)
    T = vG
    sW = 32
    def B(ks, tt):
        i = 4 * ks + tt
        return A(4 * i, 4) if i < 64 else V(vB + 4 * (i - 64), 4)
    a('s_cmp_ge_u32 s2, 256')
    a('s_cbranch_scc1 K3_END')
    st = Stamper(a, opt.get('ts'), 255, 2)
    st('start')
    a('s_load_dwordx2 s[14:15], s[0:1], 88')
    a(f'v_lshrrev_b32 v{T}, 6, v0')
    a(f'v_and_b32 v{vL}, 63, v0')
    a(f'v_readfirstlane_b32 s{sW}, v{T}')
    a(f'v_lshlrev_b32 v{vL16}, 4, v{vL}')
    a(f'v_and_b32 v{T}, 12, v{vL}')
    a(f'v_and_b32 v{T+1}, 15, v{vL}')
    a(f'v_add_u32 v{T}, v{T}, v{T+1}')
    a(f'v_mul_u32_u24 v{T}, 1152, v{T}')
    a(f'v_and_b32 v{T+1}, 48, v{vL}')
    a(f'v_add_u32 v{vHO}, v{T}, v{T+1}')
    a('s_lshr_b32 s33, s2, 3')
    a('s_and_b32 s34, s2, 7')
    a('s_lshl_b32 s35, s33, 6')
    a(f's_lshr_b32 s36, s{sW}, 1')
    a('s_lshl_b32 s36, s36, 5')
    a('s_add_u32 s35, s35, s36')
    a(f's_and_b32 s36, s{sW}, 1')
    a('s_lshl_b32 s36, s36, 2')
    a('s_add_u32 s35, s35, s36')
    a('s_mul_i32 s35, s35, 1152')
    a(f's_add_u32 s35, s35, {WS_HN}')
    a('s_lshl_b32 s36, s34, 2')
    a(f's_add_u32 s36, s36, s{sW}')
    a(f's_mul_i32 s36, s36, {WSTREAM}')
    a(f's_add_u32 s36, s36, {WS_W}')
    a(f's_lshl_b32 s37, s{sW}, 10')
    a.waitall()
    srd(a, 20, 14, WS_SIZE)
    st('karg')
    nld = 0
    wid = {}
    def wload():
        nonlocal nld
        if nld >= 486: return False
        if nld % 4 == 0 and nld: a('s_add_u32 s36, s36, 4096')
        wid[nld] = a(f'buffer_load_dwordx4 {V(vR+4*(nld%RING),4)}, v{vL16}, s[20:23], s36 offen offset:{1024*(nld%4)}')
        nld += 1
        return True
    hid = {}
    def hload(ks):
        a(f's_add_u32 m0, s37, {L_HN + 4096*ks - 64*ks}')
        a('s_nop 0')
        hid[ks] = a(f'buffer_load_dwordx4 v{vHO}, s[20:23], s35 offen offset:{64*ks} lds')
    st0 = opt.get('k3_st', [4, 10, 18])
    for ks in range(st0[0]): hload(ks)
    for _ in range(8): wload()
    for ks in range(st0[0], st0[1]): hload(ks)
    for _ in range(8): wload()
    for ks in range(st0[1], 18): hload(ks)
    while nld < RING - 1: wload()
    a(f's_lshl_b32 s38, s{sW}, 14')
    a(f's_add_u32 s38, s38, {L_H}')
    a(f'v_add_u32 v{vHW}, s38, v{vL16}')
    a(f's_lshr_b32 s38, s{sW}, 1')
    a('s_lshl_b32 s38, s38, 12')
    a(f's_and_b32 s39, s{sW}, 1')
    a('s_lshl_b32 s39, s39, 3')
    a('s_add_u32 s38, s38, s39')
    a(f's_add_u32 s38, s38, {L_H + 65536}')
    a(f'v_add_u32 v{vHW8}, s38, v{vL16}')
    a(f'v_add_u32 v{vLH}, 65536, v{vL16}')
    a(f'v_add_u32 v{vLH2}, 131072, v{vL16}')
    a(f'v_bfe_u32 v{T}, v{vL}, 2, 2')
    a(f'v_mul_u32_u24 v{T}, 73728, v{T}')
    a(f'v_lshrrev_b32 v{T+1}, 4, v{vL}')
    a(f'v_lshl_add_u32 v{T}, v{T+1}, 6, v{T}')
    a(f'v_and_b32 v{T+1}, 3, v{vL}')
    a(f'v_lshl_add_u32 v{vPO}, v{T+1}, 4, v{T}')
    a(f's_mul_i32 s40, s33, {8*73728}')
    a('s_lshl_b32 s41, s34, 8')
    a('s_add_u32 s40, s40, s41')
    a(f's_mul_i32 s41, s{sW}, {9*2048}')
    a('s_add_u32 s40, s40, s41')
    a(f's_add_u32 s40, s40, {WS_P}')
    a(f's_mov_b32 s42, {fbits(-GELU_C)}')
    def ldsrd(dst, addr):
        base = (vL16, vLH, vLH2)[addr >> 16]
        return f'ds_read_b128 {dst}, v{base} offset:{addr & 65535}'
    content = {}
    def brd(img, ks):
        def one(tt):
            content[(ks, tt)] = img
            a(ldsrd(B(ks, tt), img + 4096 * ks + 1024 * tt))
        return [(lambda tt=tt: one(tt)) for tt in range(4)]
    def gelu(ft):
        buf = vACC + 32 * (ft % 2); C = []
        for tt in range(4):
            g = buf + 4 * tt; u = buf + 16 + 4 * tt; t = T + 4 * (tt % 2)
            for h in range(2):
                C.append([f'v_fma_f32 v{t+2*h+i}, -v{g+2*h+i}, v{g+2*h+i}, s42' for i in range(2)])
                C.append([f'v_mul_f32 v{t+2*h+i}, v{t+2*h+i}, v{g+2*h+i}' for i in range(2)])
            for i in range(4): C.append([f'v_exp_f32 v{t+i}, v{t+i}'])
            for h in range(2): C.append([f'v_add_f32 v{t+2*h+i}, 1.0, v{t+2*h+i}' for i in range(2)])
            for i in range(4): C.append([f'v_rcp_f32 v{t+i}, v{t+i}'])
            for h in range(2): C.append([f'v_mul_f32 v{g+2*h+i}, v{g+2*h+i}, v{u+2*h+i}' for i in range(2)])
            for h in range(2): C.append([f'v_mul_f32 v{t+2*h+i}, v{t+2*h+i}, v{g+2*h+i}' for i in range(2)])
            C.append([f'v_cvt_pk_bf16_f32 v{vPK+2*tt+h}, v{t+2*h}, v{t+2*h+1}' for h in range(2)])
            if ft < 8: C.append([f'ds_write_b64 v{vHW}, {V(vPK+2*tt,2)} offset:{4096*(ft//2)+1024*tt+8*(ft%2)}'])
            else: C.append([f'ds_write_b64 v{vHW8}, {V(vPK+2*tt,2)} offset:{1024*tt}'])
        return C
    def run(chunk):
        for x in chunk:
            if callable(x): x()
            else: a(x)
    ncons = 0
    def group(accs, ks, first, fill):
        nonlocal ncons
        fr = V(vR + 4 * (ncons % RING), 4)
        for tt in range(4):
            assert content[(ks, tt)] == (L_HN if ncons < 324 else L_H), (ncons, ks, tt)
            a(f'v_mfma_f32_16x16x32_bf16 {V(accs+4*tt,4)}, {fr}, {B(ks,tt)}, {0 if first else V(accs+4*tt,4)}')
            if tt == 0 and wload(): continue
            if tt == 3 and ncons + 1 in wid: a.wait(wid[ncons + 1])
            if fill: run(fill.pop(0))
        ncons += 1
    bar = lambda ids: [lambda: a.wait(*ids), 's_barrier']
    run(bar([hid[st0[0] - 1]]))
    for ks in range(2): run(brd(L_HN, ks))
    for ft in range(9):
        a.tag = f'k3 ft{ft}'
        st(f'f{ft}')
        fill = ([[]] * 3 + gelu(ft - 1)) if ft else []
        for ks in range(18):
            if ft == 0 and ks + 2 < 18:
                if ks + 2 in st0: fill.append(bar([hid[st0[st0.index(ks + 2) + 1] - 1]]))
                fill += [[x] for x in brd(L_HN, ks + 2)]
            if ft == 8 and ks == 14:
                assert not fill
                fill = [[lambda: a.waitall(vm=False), 's_barrier']] + [[x] for k in range(6) for x in brd(L_H, k)]
            for gu in range(2):
                group(vACC + 32 * (ft % 2) + 16 * gu, ks, ks == 0, fill)
        if ft < 8: assert not fill, (ft, len(fill))
    carry = fill
    def epi(dt):
        acc = vACC + 32 + 16 * (dt % 2); C = []
        for p in range(2):
            for k in range(2):
                tt = 2 * p + k
                C.append([f'v_cvt_pk_bf16_f32 v{vPK+4*p+2*k+h}, v{acc+4*tt+2*h}, v{acc+4*tt+2*h+1}' for h in range(2)])
            C.append([f's_add_u32 s41, s40, {4*73728*p + 2048*dt}', f'buffer_store_dwordx4 {V(vPK+4*p,4)}, v{vPO}, s[20:23], s41 offen'])
        return C
    for dt in range(9):
        a.tag = f'k3 dt{dt}'
        st(f'd{dt}')
        if dt == 0:
            g = gelu(8); r = [[x] for k in range(6, 16) for x in brd(L_H, k)]
            fill = list(carry)
            g = [g[i] + g[i + 1] for i in range(0, len(g), 2)]
            while g or r:
                fill.append((r.pop(0) if r else []) + (g.pop(0) if g else []))
            fill.append([lambda: a.waitall(vm=False), 's_barrier'] + brd(L_H, 16) + brd(L_H, 17))
        else:
            fill = [[]] * 3 + epi(dt - 1)
        for ks in range(18):
            if dt == 0 and ks == 16: assert not fill
            group(vACC + 32 + 16 * (dt % 2), ks, ks == 0, fill)
        assert not fill
    for c in epi(8): run(c)
    st('done')
    st.flush(T)
    a.label('K3_END')
    a('s_endpgm')
    return a, dict(name='k3_kernel', nv=512, acc=256, lds=K3_LDS, grid=256, block=256)

def gen_k4(opt):
    a = Asm(); a.tag = 'k4'
    vP = 0; vH = 72; vD = 92; vA = 112; T = 120; vL, vL16, vO = 126, 127, 128
    sW = 32
    a('s_cmp_ge_u32 s2, 256')
    a('s_cbranch_scc1 K4_END')
    st = Stamper(a, opt.get('ts'), 135, 3)
    st('start')
    a('s_load_dwordx2 s[12:13], s[0:1], 72')
    a('s_load_dwordx2 s[14:15], s[0:1], 88')
    a(f'v_lshrrev_b32 v{T}, 6, v0')
    a(f'v_and_b32 v{vL}, 63, v0')
    a(f'v_readfirstlane_b32 s{sW}, v{T}')
    a(f'v_lshlrev_b32 v{vL16}, 4, v{vL}')
    a(f'v_bfe_u32 v{T}, v{vL}, 4, 1')
    a(f'v_and_b32 v{T+1}, 3, v{vL}')
    a(f'v_lshl_add_u32 v{T}, v{T}, 2, v{T+1}')
    a(f'v_mul_u32_u24 v{T}, 1152, v{T}')
    a(f'v_and_b32 v{T+1}, 12, v{vL}')
    a(f'v_lshl_add_u32 v{T}, v{T+1}, 1, v{T}')
    a(f'v_and_b32 v{T+1}, 32, v{vL}')
    a(f'v_add_u32 v{vO}, v{T}, v{T+1}')
    a(f'v_lshlrev_b32 v{vO+1}, 1, v{vO}')
    a(f'v_lshl_add_u32 v{vO+2}, v{T+1}, 25, v{T}')
    a('s_mul_i32 s33, s2, 73728')
    a(f's_mul_i32 s34, s{sW}, {9*2048}')
    a('s_add_u32 s33, s33, s34')
    a(f's_add_u32 s33, s33, {WS_P}')
    a(f's_mul_i32 s35, s2, {8*1152}')
    a(f's_lshl_b32 s36, s{sW}, 8')
    a('s_add_u32 s36, s36, s35')
    a(f's_lshl_b32 s37, s{sW}, 5')
    a('s_add_u32 s37, s37, s35')
    a('s_add_u32 s37, s37, 1024')
    a('s_lshl_b32 s38, s36, 1')
    a(f's_add_u32 s38, s38, {WS_H}')
    a('s_lshl_b32 s39, s37, 1')
    a(f's_add_u32 s39, s39, {WS_H}')
    a.waitall()
    srd(a, 20, 14, WS_SIZE)
    srd(a, 16, 12, 2048 * 1152)
    st('karg')
    for i in range(18):
        if i % 4 == 0 and i: a('s_add_u32 s33, s33, 4096')
        a(f'buffer_load_dwordx4 {V(vP+4*i,4)}, v{vL16}, s[20:23], s33 offen offset:{1024*(i%4)}')
    for u in range(4): a(f'buffer_load_dwordx4 {V(vH+4*u,4)}, v{vO+1}, s[20:23], s38 offen offset:{128*u}')
    a(f'buffer_load_dwordx4 {V(vH+16,4)}, v{vO+1}, s[20:23], s39 offen')
    a(f'v_and_b32 v{T}, 1, v{vL}')
    a(f'v_lshlrev_b32 v{T}, 4, v{T}')
    a(f'v_mov_b32 v{T+1}, 0x3f80')
    a(f'v_lshlrev_b32 v{T}, v{T}, v{T+1}')
    a(f'v_bfe_u32 v{T+1}, v{vL}, 1, 3')
    for i in range(8):
        a(f'v_cmp_eq_u32 vcc, {i}, v{T+1}')
        a(f'v_cndmask_b32 v{vA+i}, 0, v{T}, vcc')
    a(f's_mov_b32 s40, {fbits(1/ALPHA**2)}')
    for i in range(18):
        dt = i // 2; d = V(vD + 4 * (dt // 2), 4)
        a(f'v_mfma_f32_16x16x32_bf16 {d}, {V(vA+4*(dt%2),4)}, {V(vP+4*i,4)}, {d if i % 4 else 0}')
    st('mfma')
    for u in range(5):
        for r in range(4): a(f'v_fmac_f32 v{vH+4*u+r}, s40, v{vD+4*u+r}')
        for h in range(2): a(f'v_cvt_pk_bf16_f32 v{vH+4*u+h}, v{vH+4*u+2*h}, v{vH+4*u+2*h+1}')
        if u < 4: a(f'buffer_store_dwordx2 {V(vH+4*u,2)}, v{vO}, s[16:19], s36 offen offset:{64*u}')
        else: a(f'buffer_store_dwordx2 {V(vH+4*u,2)}, v{vO+2}, s[16:19], s37 offen')
    st.flush(T)
    a.label('K4_END')
    a('s_endpgm')
    return a, dict(name='k4_kernel', nv=136, acc=136, lds=0, grid=256, block=256)
```

```python
import sys, json
from common import *
from k1 import gen_k1
from k2 import gen_k2
from k3 import gen_k3, gen_k4
from kf import gen_kf
NAME = 'sequential_preLN__grouped_kv_mqa__glu_gated_geglu__prompt'
def build(opt, verbose=False):
    ks = [g(opt) for g in ((gen_k1, gen_k2, gen_k3, gen_k4) if opt.get('unfused') else (gen_k1, gen_kf))]
    if opt.get('empty'):
        e = Asm(); e('s_endpgm')
        ks.append((e, dict(name='e_kernel', nv=64, acc=64, lds=0, grid=256, block=256, rep=opt['empty'])))
    if opt.get('spin'):
        (ka, ia), (kb, ib) = opt['spin']
        e = Asm()
        e('s_cmp_ge_u32 s2, 1'); e('s_cbranch_scc1 SP_END')
        e('s_load_dwordx2 s[4:5], s[0:1], 88'); e.waitall()
        e(f's_add_u32 s4, s4, {WS_TS}'); e('s_addc_u32 s5, s5, 0')
        e(f's_load_dword s6, s[4:5], {ka*0x40000+4*ia}'); e(f's_load_dword s7, s[4:5], {kb*0x40000+4*ib}')
        e('s_memrealtime s[8:9]'); e.waitall()
        e('s_sub_u32 s6, s7, s6'); e('s_min_u32 s6, s6, 20000')
        e.label('SP_L')
        e('s_memrealtime s[10:11]'); e.waitall()
        e('s_sub_u32 s10, s10, s8'); e('s_cmp_lt_u32 s10, s6'); e('s_cbranch_scc1 SP_L')
        e.label('SP_END'); e('s_endpgm')
        ks.append((e, dict(name='sp_kernel', nv=64, acc=64, lds=0, grid=1, block=64)))
    ref = open(f'cdna_kernels/{NAME}.s.ref').read().split('\n')
    head = [l for l in ref if l.startswith(';') and '@launch' not in l and 'Override' not in l and 'grid=ceil' not in l]
    s = '\n'.join(head) + '\n'
    for a, d in ks: s += f"; @launch kernel={d['name']} grid=({d['grid']},1,1) block=({d['block']},1,1) lds={d['lds']}\n" * d.get('rep', 1)
    s += '.amdgcn_target "amdgcn-amd-amdhsa--gfx950"\n.text\n'
    for a, d in ks:
        s += kernel_header(d['name']) + a.text()
        print(d['name'], 'instrs', a.n, 'nops', a.nops, 'autowaits', a.autowaits, file=sys.stderr)
        if verbose:
            for l in a.log: print('   ', l, file=sys.stderr)
    s += 'CODE_END:\n.section .rodata,"a"\n'
    for a, d in ks: s += kernel_desc(d['name'], d['nv'], d['acc'])
    return s
if __name__ == '__main__':
    out = sys.argv[1] if len(sys.argv) > 1 else f'cdna_kernels/{NAME}.s'
    opt = json.loads(sys.argv[2]) if len(sys.argv) > 2 else {}
    open(out, 'w').write(build(opt, verbose='-v' in sys.argv))
```

```python
import math
from asmlib import *
WS_Q  = 0
WS_KM = 0x240000
WS_KR = WS_KM + 0x10000
WS_VT = WS_KR + 0x4000
WS_WO = 0x280000
WS_HN = 0x340000
WS_H  = 0x580000
WS_W  = 0xA00000
WS_P  = 0x1A00000
WS_FL = 0x2C00000
WS_SIZE = 0x2E00000
WSTREAM = 486 * 1024
OOB = 0x40000000
LOG2E = 1.4426950408889634
QSCALE = 18 ** -0.5 * LOG2E
K1C = 2 * math.sqrt(2 / math.pi) * LOG2E
ALPHA = (K1C * 0.044715) ** (1 / 3)
GELU_C = K1C / ALPHA
EPS = 1e-5
def srd(a, d, lo, size):
    a(f's_mov_b32 s{d}, s{lo}')
    a(f's_mov_b32 s{d+1}, s{lo+1}')
    a(f's_mov_b32 s{d+2}, {size}')
    a(f's_mov_b32 s{d+3}, 0x20000')

WS_TS = 0x2C80000
class Stamper:
    def __init__(s, a, on, vreg, kidx, sW=32):
        s.a, s.on, s.v, s.k, s.sW, s.n, s.names = a, on, vreg, kidx, sW, 0, []
    def __call__(s, name):
        if not s.on: return
        a = s.a
        a('s_memrealtime s[100:101]'); a.waitall(vm=False)
        a(f'v_writelane_b32 v{s.v}, s100, {s.n}')
        a('s_memtime s[100:101]'); a.waitall(vm=False)
        a(f'v_writelane_b32 v{s.v}, s100, {32 + s.n}')
        s.n += 1; s.names.append(name)
    def flush(s, tmp, final=True):
        if not s.on: return
        a = s.a
        if final:
            a.waitall(); s('end')
        a('s_mov_b64 exec, -1')
        a(f'v_mbcnt_lo_u32_b32 v{tmp}, -1, 0')
        a(f'v_mbcnt_hi_u32_b32 v{tmp}, -1, v{tmp}')
        a(f'v_lshlrev_b32 v{tmp}, 2, v{tmp}')
        a('s_lshl_b32 s100, s2, 2')
        a(f's_add_u32 s100, s100, s{s.sW}')
        a('s_lshl_b32 s100, s100, 8')
        a(f's_add_u32 s100, s100, {WS_TS + s.k * 0x40000}')
        a(f'buffer_store_dword v{s.v}, v{tmp}, s[20:23], s100 offen')
        a.comment('STAMPS %d %s' % (s.k, ','.join(s.names)))
FL0 = WS_FL
FL1 = WS_FL + 0x1000
FL2 = FL1 + 0x20000
assert FL2 + 0x20000 <= WS_TS
```

```python
from common import *
K1_X = 92160 + 4096
K1_LDS = K1_X + 65536
def gen_k1(opt):
    a = Asm(); a.tag = 'k1'
    X = 0
    ACC = 72
    WF = 92
    SUM = 132
    ONE = 136
    T = 140
    vL, vXO, vP, vO4, vTA, vT4 = 150, 151, 152, 154, 155, 159
    vWoO, vNM, vVAR, vR8, vCS = 160, 161, 162, 163, 164
    vPT = 166
    sW, sRB, sCG = 32, 33, 34
    a('s_cmp_ge_u32 s2, 256')
    a('s_cbranch_scc1 K1_END')
    st = Stamper(a, opt.get('ts'), 167, 0)
    st('start')
    a('s_load_dwordx8 s[4:11], s[0:1], 0')
    a('s_load_dwordx2 s[12:13], s[0:1], 32')
    a('s_load_dwordx2 s[14:15], s[0:1], 88')
    a(f'v_lshrrev_b32 v{T}, 6, v0')
    a(f'v_and_b32 v{vL}, 63, v0')
    a(f'v_readfirstlane_b32 s{sW}, v{T}')
    if opt.get('pfcode', 1):
        a('s_getpc_b64 s[54:55]')
        a.label('K1_PC')
        a('s_lshr_b32 s3, s2, 3')
        a('s_lshl_b32 s3, s3, 2')
        a(f's_add_u32 s3, s3, s{sW}')
        a('s_cmp_ge_u32 s3, (CODE_END-K1_PC+8191)/8192')
        a('s_cbranch_scc1 K1_NOPF')
        a('s_lshl_b32 s3, s3, 13')
        a(f'v_lshl_add_u32 v{T}, v{vL}, 7, s3')
        a(f'v_min_u32 v{T}, CODE_END-K1_PC-4, v{T}')
        a.raw(f'    global_load_dword v165, v{T}, s[54:55]')
        a.label('K1_NOPF')
    a(f's_and_b32 s{sRB}, s2, 7')
    a(f's_lshl_b32 s{sRB}, s{sRB}, 2')
    a(f's_bfe_u32 s3, s2, 0x20003')
    a(f's_add_u32 s{sRB}, s{sRB}, s3')
    a(f's_lshr_b32 s{sCG}, s2, 5')
    vXO1, vXA = 168, 169
    a(f'v_lshrrev_b32 v{T}, 3, v{vL}')
    a(f'v_lshrrev_b32 v{T+1}, 4, v{vL}')
    a(f'v_and_b32 v{T+2}, 7, v{vL}')
    a(f'v_xor_b32 v{T+1}, v{T+1}, v{T+2}')
    a(f'v_mul_u32_u24 v{T}, 1152, v{T}')
    a(f'v_lshl_add_u32 v{vXO}, v{T+1}, 4, v{T}')
    a(f'v_xor_b32 v{vXO1}, 64, v{vXO}')
    a(f'v_add_u32 v{vXO1}, {8*1152}, v{vXO1}')
    a(f's_lshl_b32 s42, s{sW}, 10')
    a(f's_lshl_b32 s59, s{sW}, 14')
    a(f's_add_u32 s59, s59, {K1_X}')
    a(f's_lshl_b32 s35, s{sRB}, 2')
    a(f's_add_u32 s35, s35, s{sW}')
    a(f's_mul_i32 s36, s35, {16*1152}')
    a(f'v_lshrrev_b32 v{vR8}, 3, v{vL}')
    a(f'v_and_b32 v{T}, 6, v{vR8}')
    a(f'v_and_b32 v{vCS}, 7, v{vL}')
    a(f'v_xor_b32 v{vCS}, v{vCS}, v{T}')
    a(f'v_and_b32 v{T}, 4, v{vR8}')
    a(f'v_add_u32 v{T+2}, v{vR8}, v{T}')
    a(f's_and_b32 s37, s{sW}, 1')
    a(f's_lshl_b32 s37, s37, 4')
    a(f's_lshr_b32 s38, s{sW}, 1')
    a(f's_lshl_b32 s38, s38, 2')
    a(f's_add_u32 s37, s37, s38')
    a(f'v_add_u32 v{T+2}, s37, v{T+2}')
    a('s_lshr_b32 s56, s2, 3')
    a(f's_lshl2_add_u32 s56, s56, s{sW}')
    a('s_and_b32 s57, s2, 7')
    a('s_mul_i32 s57, s57, 36')
    a(f's_mov_b32 s58, {2048*1152}')
    a('s_mov_b32 s63, 0x20000')
    a(f'v_lshlrev_b32 v166, 7, v{vL}')
    a.waitall()
    st('karg')
    def touch():
        a('s_cmp_ge_u32 s56, 36')
        a('s_cselect_b32 s60, s6, s4')
        a('s_cselect_b32 s61, s7, s5')
        a(f's_cselect_b32 s62, {576*1152}, s58')
        a('s_cselect_b32 s57, -36, s57')
        a('s_cmp_ge_u32 s56, 117')
        a('s_cselect_b32 s60, s8, s60')
        a('s_cselect_b32 s61, s9, s61')
        a(f's_cselect_b32 s62, {576*36}, s62')
        a('s_cselect_b32 s57, -117, s57')
        a('s_cmp_ge_u32 s56, 120')
        a('s_cselect_b32 s60, s10, s60')
        a('s_cselect_b32 s61, s11, s61')
        a('s_cselect_b32 s57, -120, s57')
        a('s_add_u32 s57, s57, s56')
        a('s_lshl_b32 s57, s57, 13')
        a('buffer_load_dword v166, v166, s[60:63], s57 offen')
    if opt.get('k1touch', 0) == 1: touch()
    srd(a, 16, 4, 2048 * 1152)
    xid = {}
    for kp in range(9):
        for rh in range(2):
            if kp < 8: a(f's_add_u32 m0, s59, {2048*kp + 1024*rh - 128*kp}')
            else: a(f's_add_u32 m0, s42, {5120*(16+rh) - 128*kp}')
            xid[kp] = a(f'buffer_load_dwordx4 v{(vXO, vXO1)[rh]}, s[16:19], s36 offen offset:{128*kp} lds')
    if opt.get('k1touch', 0) == 2: touch()
    if opt.get('diag'):
        st('xiss')
        for kp in (0, 4, 8): a.wait(xid[kp]); st(f'xa{kp}')
    srd(a, 24, 6, 576 * 1152)
    a(f's_cmp_eq_u32 s{sCG}, 7')
    a('s_cbranch_scc1 K1_PKV')
    a(f'v_mul_u32_u24 v{T+3}, 1152, v{T+2}')
    a(f'v_lshl_add_u32 v{T+3}, v{vCS}, 4, v{T+3}')
    a(f's_lshl_b32 s37, s{sCG}, 7')
    a(f's_add_u32 s38, s6, s37')
    a(f's_addc_u32 s39, s7, 0')
    a(f'v_mov_b32 v{T+4}, s38')
    a(f'v_mov_b32 v{T+5}, s39')
    a(f's_mov_b32 s40, {32*1152}')
    a('s_branch K1_PDONE')
    a.label('K1_PKV')
    a(f'v_mul_u32_u24 v{T+3}, 36, v{T+2}')
    a(f'v_and_b32 v{T}, 1, v{vCS}')
    a(f'v_lshrrev_b32 v{T+1}, 1, v{vCS}')
    a(f'v_lshlrev_b32 v{T+6}, 4, v{T}')
    a(f'v_cmp_gt_u32 vcc, 4, v{vCS}')
    a(f'v_cndmask_b32 v{T+6}, 20, v{T+6}, vcc')
    a(f'v_cndmask_b32 v{T}, v{T}, v{T+1}, vcc')
    a(f'v_add_u32 v{T+3}, v{T+3}, v{T+6}')
    a(f'v_cmp_eq_u32 vcc, 1, v{T}')
    a(f'v_mov_b32 v{T+4}, s8')
    a(f'v_mov_b32 v{T+5}, s9')
    a(f'v_mov_b32 v{T+6}, s10')
    a(f'v_mov_b32 v{T+7}, s11')
    a(f'v_cndmask_b32 v{T+4}, v{T+4}, v{T+6}, vcc')
    a(f'v_cndmask_b32 v{T+5}, v{T+5}, v{T+7}, vcc')
    a(f's_mov_b32 s40, {32*36}')
    a.label('K1_PDONE')
    a(f'v_add_co_u32 v{vP}, vcc, v{T+4}, v{T+3}')
    a('s_mov_b32 s41, 0')
    a(f'v_lshrrev_b32 v{T}, 1, v{vL}')
    a(f'v_addc_co_u32 v{vP+1}, vcc, 0, v{T+5}, vcc')
    a(f'v_and_b32 v{T+1}, 12, v{T}')
    a(f'v_lshlrev_b32 v{T+1}, 1, v{T+1}')
    a(f'v_and_or_b32 v{T+1}, v{T}, 3, v{T+1}')
    a(f'v_lshrrev_b32 v{T}, 4, v{T}')
    a(f'v_lshl_add_u32 v{T+8}, v{T}, 2, v{T+1}')
    a(f'v_and_b32 v{T}, 1, v{vL}')
    a(f'v_lshlrev_b32 v{T+9}, 4, v{T}')
    a(f's_movk_i32 s47, 1152')
    a(f'v_mad_u32_u24 v{vO4}, v{T+8}, s47, v{T+9}')
    a(f's_lshl_b32 s43, s{sCG}, 5')
    a(f's_add_u32 s43, s43, 896')
    stage_last = {}
    wl = []
    for u in range(5):
        wl.append([f's_add_u32 s64, s{sW}, {4*u}'] + (['s_min_u32 s64, s64, 17'] if u == 4 else []) +
                  ['s_mul_i32 s65, s64, 5120', 's_add_u32 m0, s65, 4096', f's_mul_i32 s65, s64, {32*1152}', 's_add_u32 s65, s65, s43',
                   f'buffer_load_dwordx4 v{vO4}, s[24:27], s65 offen lds'])
        for ks in range(4*u, min(4*u+4, 18)):
            wl.append([f's_add_u32 m0, s42, {5120*ks}'] + ([f'v_lshl_add_u64 {V(vP,2)}, {V(vP,2)}, 0, s[40:41]'] if ks else []) +
                      [lambda u=u: stage_last.__setitem__(u, a(f'global_load_lds_dwordx4 {V(vP,2)}, off'))])
    def wissue(n):
        for _ in range(n):
            if wl:
                for x in wl.pop(0):
                    if callable(x): x()
                    else: a(x)
    srd(a, 28, 12, 576 * 1152)
    srd(a, 20, 14, WS_SIZE)
    a('s_lshl_b32 s44, s2, 2')
    a(f's_add_u32 s44, s44, s{sW}')
    a('s_lshl_b32 s45, s44, 2')
    a('s_lshl_b32 s44, s44, 7')
    a(f's_add_u32 s45, s45, {FL0}')
    a(f's_add_u32 s46, s44, {FL1}')
    a(f's_add_u32 s44, s44, {FL2}')
    a(f'v_mov_b32 v{T}, {OOB}')
    a(f'v_mov_b32 v{T+1}, 0')
    a(f'v_writelane_b32 v{T}, s45, 0')
    a(f'v_writelane_b32 v{T}, s46, 1')
    a(f'v_writelane_b32 v{T}, s44, 2')
    a(f'buffer_store_dword v{T+1}, v{T}, s[20:23], 0 offen')
    a('s_min_u32 s44, s2, 161')
    a('s_mul_i32 s45, s44, 57')
    a('s_lshr_b32 s45, s45, 9')
    assert all((u * 57) >> 9 == u // 9 for u in range(162))
    a('s_mul_i32 s46, s45, 9')
    a('s_sub_u32 s46, s44, s46')
    a('s_lshl_b32 s46, s46, 2')
    a(f's_add_u32 s46, s46, s{sW}')
    a('s_lshl_b32 s48, s45, 5')
    a(f'v_add_u32 v{T}, s48, v{T+8}')
    a(f'v_lshrrev_b32 v{T+1}, 4, v{T}')
    a(f'v_lshl_add_u32 v{T+1}, v{T+1}, 1, v{T}')
    a(f'v_and_b32 v{T+2}, 60, v{T}')
    a(f'v_lshrrev_b32 v{T+2}, 1, v{T+2}')
    a(f'v_and_or_b32 v{T+2}, v{T}, 1, v{T+2}')
    a(f'v_bfe_u32 v{T+3}, v{T}, 1, 1')
    a(f'v_mad_u32_u24 v{T+2}, v{T+2}, 18, v{T+3}')
    a(f'v_add_u32 v{T+2}, 16, v{T+2}')
    a(f'v_cmp_gt_u32 vcc, 512, v{T}')
    a(f'v_cndmask_b32 v{T+1}, v{T+2}, v{T+1}, vcc')
    a(f'v_mad_u32_u24 v{vWoO}, v{T+1}, s47, v{T+9}')
    a('s_lshl_b32 s48, s46, 5')
    a('s_add_u32 m0, s42, 92160')
    a('s_mul_i32 s49, s46, 57')
    wo_ld = a(f'buffer_load_dwordx4 v{vWoO}, s[28:31], s48 offen lds')
    a('s_lshr_b32 s49, s49, 9')
    a('s_mul_i32 s50, s49, 72')
    a('s_add_u32 s50, s50, s46')
    a('s_lshr_b32 s51, s45, 1')
    a('s_mul_i32 s51, s51, 9')
    a('s_add_u32 s50, s50, s51')
    a('s_lshl_b32 s50, s50, 1')
    a('s_and_b32 s51, s45, 1')
    a('s_add_u32 s50, s50, s51')
    a('s_lshl_b32 s50, s50, 10')
    a(f's_add_u32 s50, s50, {WS_WO}')
    a(f'v_bfe_u32 v{T}, v{vL}, 2, 3')
    a(f'v_lshrrev_b32 v{T+1}, 5, v{vL}')
    a(f'v_lshlrev_b32 v{T+1}, 10, v{T+1}')
    a(f'v_lshl_add_u32 v{T+1}, v{T}, 7, v{T+1}')
    a(f'v_and_b32 v{T}, 6, v{T}')
    a(f'v_lshl_add_u32 v{T+1}, v{T}, 4, v{T+1}')
    a(f'v_and_b32 v{T}, 3, v{vL}')
    a(f'v_lshl_add_u32 v{vTA}, v{T}, 3, v{T+1}')
    for t in range(1, 4): a(f'v_xor_b32 v{vTA+t}, {32*t}, v{vTA}')
    a(f'v_lshlrev_b32 v{vT4}, 3, v{vL}')
    for i in range(4): a(f'v_mov_b32 v{ONE+i}, 0x3f803f80')
    a('s_mov_b32 s52, 0x00003f80')
    a('s_mov_b32 s53, 0x3f800000')
    a(f'v_mov_b32 v{vVAR}, 0')
    a(f'v_bfe_u32 v{T}, v{vL}, 1, 3')
    a(f'v_lshrrev_b32 v{T+1}, 4, v{vL}')
    a(f'v_xor_b32 v{T}, v{T}, v{T+1}')
    a(f'v_and_b32 v{T+1}, 7, v{vL}')
    a(f'v_lshlrev_b32 v{T+1}, 7, v{T+1}')
    a(f'v_lshl_add_u32 v{T}, v{T}, 4, v{T+1}')
    a(f'v_bfe_u32 v{T+1}, v{vL}, 3, 1')
    a(f'v_lshl_add_u32 v{vXA}, v{T+1}, 10, v{T}')
    a(f'v_add_u32 v{vXA}, s59, v{vXA}')
    a(f'v_xor_b32 v{vXA+1}, 64, v{vXA}')
    a(f'v_mul_u32_u24 v{T+1}, 5120, v{T+1}')
    a(f's_add_u32 s66, s42, {5120*16}')
    a(f'v_add3_u32 v{vXA+2}, v{T}, v{T+1}, s66')
    a(f'v_xor_b32 v{vXA+3}, 64, v{vXA+2}')
    assert opt.get('k1w0', 10) <= 21
    wissue(opt.get('k1w0', 10))
    st('issued')
    for kp in range(10):
        if kp < 9:
            a.wait(xid[kp])
            for h in range(2):
                if kp < 8: a(f'ds_read_b128 {V(X+8*kp+4*h,4)}, v{vXA+h} offset:{2048*kp}')
                else: a(f'ds_read_b128 {V(X+8*kp+4*h,4)}, v{vXA+2+h}')
        if kp:
            for ks in (2*kp-2, 2*kp-1):
                a(f'v_mfma_f32_16x16x32_bf16 {V(SUM,4)}, {V(ONE,4)}, {V(X+4*ks,4)}, {V(SUM,4) if ks else 0}')
    a(f'v_mul_f32 v{vNM}, {fbits(-1/576)}, v{SUM}')
    st('xarr')
    def dots(g):
        b = WF + 8 * (g % 2)
        for i in range(4):
            a(f'v_dot2_f32_bf16 v{b+2*i}, v{X+4*g+i}, s52, v{vNM}')
            a(f'v_dot2_f32_bf16 v{b+2*i+1}, v{X+4*g+i}, s53, v{vNM}')
    def cvts(g):
        b = WF + 8 * (g % 2)
        for i in range(4): a(f'v_cvt_pk_bf16_f32 v{X+4*g+i}, v{b+2*i}, v{b+2*i+1}')
    def sq(g):
        for i in range(4): a(f'v_dot2_f32_bf16 v{vVAR}, v{X+4*g+i}, v{X+4*g+i}, v{vVAR}')
    dots(0)
    for g in range(18):
        if g + 1 < 18: dots(g + 1)
        cvts(g); wissue(1); sq(g)
    wissue(99)
    st('centered')
    bars = opt.get('k1_bars', {0: 1, 8: 4})
    def reads(ks):
        if ks in bars:
            a.wait(stage_last[bars[ks]])
            a('s_barrier')
            st(f'bar{ks}')
        if ks == 9:
            for t in range(4): a(f'v_add_u32 v{vTA+t}, {9*5120}, v{vTA+t}')
            a(f'v_add_u32 v{vT4}, {9*5120}, v{vT4}')
        o = 5120 * (ks % 9); b = WF + 20 * (ks % 2)
        L = []
        for t in range(4):
            for h in range(2): L.append(f'ds_read_b64_tr_b16 {V(b+4*t+2*h,2)}, v{vTA+t} offset:{o+2048*h}')
        for h in range(2): L.append(f'ds_read_b64_tr_b16 {V(b+16+2*h,2)}, v{vT4} offset:{o+4096+512*h}')
        return L
    for l in reads(0): a(l)
    for ks in range(18):
        b = WF + 20 * (ks % 2)
        a.wait_regs(V(b, 12))
        nxt = reads(ks + 1) if ks + 1 < 18 else []
        for t in range(5):
            if t == 3: a.wait_regs(V(b + 12, 8))
            a(f'v_mfma_f32_16x16x32_bf16 {V(ACC+4*t,4)}, {V(b+4*t,4)}, {V(X+4*ks,4)}, {V(ACC+4*t,4) if ks else 0}')
            for l in nxt[2*t:2*t+2]: a(l)
    st('gemm')
    a.wait(wo_ld)
    a(f'v_add_u32 v{T}, s42, v{vT4}')
    a(f'ds_read_b64_tr_b16 {V(WF,2)}, v{T} offset:{92160-9*5120}')
    a(f'ds_read_b64_tr_b16 {V(WF+2,2)}, v{T} offset:{92160-9*5120+512}')
    a(f'v_mov_b32 v{T+1}, v{vVAR}')
    a(f'v_lshlrev_b32 v{T+4}, 4, v{vL}')
    a(f'v_lshrrev_b32 v{T+5}, 4, v{vL}')
    a(f'v_permlane32_swap_b32 v{T+1}, v{vVAR}')
    a(f'v_add_f32 v{vVAR}, v{vVAR}, v{T+1}')
    a(f'v_mov_b32 v{T+1}, v{vVAR}')
    a(f'v_and_b32 v{T+6}, 15, v{vL}')
    a(f'v_mov_b32 v{T+2}, {fbits(EPS)}')
    a(f'v_permlane16_swap_b32 v{T+1}, v{vVAR}')
    a(f'v_add_f32 v{vVAR}, v{vVAR}, v{T+1}')
    a(f'v_fmac_f32 v{T+2}, {fbits(1/576)}, v{vVAR}')
    a(f'v_rsq_f32 v{T+2}, v{T+2}')
    a(f'buffer_store_dwordx4 {V(WF,4)}, v{T+4}, s[20:23], s50 offen')
    a(f'v_mul_f32 v{T+3}, {fbits(QSCALE)}, v{T+2}')
    def scale_pack(t, sc):
        for r in range(4): a(f'v_mul_f32 v{ACC+4*t+r}, v{sc}, v{ACC+4*t+r}')
        a(f'v_cvt_pk_bf16_f32 v{ACC+4*t}, v{ACC+4*t}, v{ACC+4*t+1}')
        a(f'v_cvt_pk_bf16_f32 v{ACC+4*t+1}, v{ACC+4*t+2}, v{ACC+4*t+3}')
    RS = 176
    a(f'v_lshl_add_u32 v{T+7}, v{T+5}, 3, s59')
    a(f's_movk_i32 s44, {RS}')
    a(f'v_mad_u32_u24 v{T+7}, v{T+6}, s44, v{T+7}')
    scale_pack(4, T+3)
    a(f'ds_write_b64 v{T+7}, {V(ACC+16,2)} offset:128')
    a(f'v_lshrrev_b32 v{X}, 2, v{vL}')
    a(f'v_and_b32 v{X+1}, 3, v{vL}')
    a(f'v_lshlrev_b32 v{X+1}, 3, v{X+1}')
    a(f'v_mad_u32_u24 v{X+2}, v{X}, s44, v{X+1}')
    a(f'v_add_u32 v{X+2}, s59, v{X+2}')
    a(f'ds_read_b64 {V(X+8,2)}, v{X+2} offset:128')
    a(f'v_mad_u32_u24 v{X+3}, v{X}, s47, v{X+1}')
    a(f's_add_u32 s45, s36, s43')
    a(f's_cmp_eq_u32 s{sCG}, 7')
    a('s_cbranch_scc1 K1_EKV')
    sv = (list(a.vm), list(a.lg))
    for t in range(4):
        scale_pack(t, T+3)
        a(f'ds_write_b64 v{T+7}, {V(ACC+4*t,2)} offset:{32*t}')
        if t == 0: a(f'buffer_store_dwordx2 {V(X+8,2)}, v{X+3}, s[20:23], s45 offen')
    a(f'v_and_b32 v{X+1}, 7, v{vL}')
    a(f'v_lshlrev_b32 v{X+1}, 4, v{X+1}')
    a(f'v_mad_u32_u24 v{X+2}, v{vR8}, s44, v{X+1}')
    a(f'v_add_u32 v{X+2}, s59, v{X+2}')
    a(f'ds_read_b128 {V(X+12,4)}, v{X+2}')
    a(f'ds_read_b128 {V(X+16,4)}, v{X+2} offset:{8*RS}')
    a(f'v_mad_u32_u24 v{X+4}, v{vR8}, s47, v{X+1}')
    a(f's_lshl_b32 s44, s{sCG}, 7')
    a(f's_add_u32 s44, s44, s36')
    a(f's_add_u32 s45, s44, {8*1152}')
    a(f'buffer_store_dwordx4 {V(X+12,4)}, v{X+4}, s[20:23], s44 offen')
    a(f'buffer_store_dwordx4 {V(X+16,4)}, v{X+4}, s[20:23], s45 offen')
    n0 = st.n
    st.flush(T)
    st.n = n0
    a('s_endpgm')
    a.label('K1_EKV')
    a.vm, a.lg = sv
    a(f'buffer_store_dwordx2 {V(X+8,2)}, v{X+3}, s[20:23], s45 offen')
    for t in range(3): scale_pack(t, T+2)
    a(f'v_lshlrev_b32 v{T}, 3, v{T+5}')
    a(f'v_lshl_add_u32 v{T}, v{T+6}, 5, v{T}')
    a('s_lshl_b32 s44, s35, 9')
    a(f's_add_u32 s44, s44, {WS_KM}')
    a(f'buffer_store_dwordx2 {V(ACC,2)}, v{T}, s[20:23], s44 offen')
    a(f'v_lshlrev_b32 v{T+1}, 1, v{T+6}')
    a(f'v_lshl_add_u32 v{T}, v{T+5}, 7, v{T+1}')
    a('s_mul_i32 s44, s35, 640')
    a(f's_add_u32 s44, s44, {WS_VT}')
    a(f'buffer_store_short v{ACC+4}, v{T}, s[20:23], s44 offen')
    a(f'buffer_store_short_d16_hi v{ACC+4}, v{T}, s[20:23], s44 offen offset:32')
    a(f'buffer_store_short v{ACC+5}, v{T}, s[20:23], s44 offen offset:64')
    a(f'buffer_store_short_d16_hi v{ACC+5}, v{T}, s[20:23], s44 offen offset:96')
    a(f'v_mov_b32 v{T+8}, {OOB}')
    a(f'v_cmp_eq_u32 vcc, 3, v{T+5}')
    a(f'v_mov_b32 v{ACC+10}, v{ACC+9}')
    a(f'v_mov_b32 v{ACC+11}, 0x3f803f80')
    a(f'v_cndmask_b32 v{T}, v{T+8}, v{T+1}, vcc')
    a(f'buffer_store_short v{ACC+10}, v{T}, s[20:23], s44 offen offset:512')
    a(f'buffer_store_short_d16_hi v{ACC+10}, v{T}, s[20:23], s44 offen offset:544')
    a(f'buffer_store_short v{ACC+11}, v{T}, s[20:23], s44 offen offset:576')
    a(f'v_cmp_eq_u32 vcc, 1, v{T+5}')
    a(f'v_lshlrev_b32 v{T+1}, 4, v{T+6}')
    a(f's_lshr_b32 s44, s{sRB}, 1')
    a(f'v_cndmask_b32 v{T+9}, v{T+8}, v{T+1}, vcc')
    a('s_lshl_b32 s44, s44, 10')
    a(f's_and_b32 s45, s{sRB}, 1')
    a('s_lshl_b32 s45, s45, 3')
    a('s_add_u32 s44, s44, s45')
    a(f's_lshl_b32 s45, s{sW}, 8')
    a('s_add_u32 s44, s44, s45')
    a(f's_add_u32 s44, s44, {WS_KR}')
    a(f'buffer_store_dwordx2 {V(ACC+10,2)}, v{T+9}, s[20:23], s44 offen')
    st.flush(T)
    a.label('K1_END')
    a('s_endpgm')
    return a, dict(name='k1_kernel', nv=176, acc=176, lds=K1_LDS, grid=256, block=256)
```

```python
from common import *
L_OP = 0
L_AF = 40960
L_BAD = L_AF + 9216
L_ST = L_BAD + 64
L_WP = L_ST + 65536
L_IMG = 40960
KF_LDS = L_WP + 40960
aKM, aV, aKR, aQM, aQR = 0, 64, 192, 208, 240
vS, vWA, vAF, vF, vO, vRING, vX = 0, 64, 100, 108, 128, 160, 224
vIDX, vIDX2, vZ, vL, vL16, vOPW, vOPW8, vOPR, vOPR8, vQO, vQR, vKO, vVO, vXO, vFA, vFD, vTS, vPF = 236, 237, 238, 240, 241, 242, 243, 244, 245, 246, 247, 248, 249, 250, 251, 252, 254, 255
vTA, vSD, vSG, vSX = vRING + 56, vRING + 60, vRING + 61, vRING + 62
sW, sMODE, sBAD = 32, 33, 34
WS = 's[20:23]'

class Sched:
    def __init__(s): s.d = {}
    def put(s, it, slot, *items): s.d.setdefault((it, slot), []).extend(items)
    def spread(s, it0, slots, items, per=1):
        it = it0; k = 0; items = list(items); last = it0
        while items:
            for _ in range(per):
                if items:
                    x = items.pop(0); last = it
                    s.put(it, slots[k], *(x if isinstance(x, list) else [x]))
            k += 1
            if k == len(slots): k = 0; it += 1
        return last
    def run(s, a, it, slot):
        for x in s.d.pop((it, slot), []):
            if callable(x): x()
            else: a(x)

def group_salu(L):
    out = []; cur = []
    for l in L:
        cur.append(l)
        if not l.startswith('s_'): out.append(cur); cur = []
    assert not cur
    return out

def gen_kf(opt):
    a = Asm(); a.tag = 'kf'
    T = vF
    SC1 = 'sc1'
    ool = []
    def spin_check(name, load, cmps):
        for c in cmps: a(c)
        a('s_nop 0')
        a(f's_cbranch_vccnz {name}_SPIN')
        a.label(f'{name}_OK')
        ool.append((name, load, cmps))
    flag = lambda v, s: ['s_mov_b64 exec, 1', f'buffer_store_dword v{v}, off, {WS}, s{s} {SC1}', 's_mov_b64 exec, -1']
    a('s_cmp_ge_u32 s2, 256')
    a('s_cbranch_scc1 KF_END')
    st = Stamper(a, opt.get('ts'), vTS, 1)
    st('start')
    a('s_load_dwordx2 s[14:15], s[0:1], 88')
    a('s_load_dwordx2 s[4:5], s[0:1], 0')
    a('s_load_dwordx4 s[8:11], s[0:1], 48')
    a('s_load_dwordx4 s[24:27], s[0:1], 64')
    a(f'v_lshrrev_b32 v{T}, 6, v0')
    a(f'v_and_b32 v{vL}, 63, v0')
    a(f'v_readfirstlane_b32 s{sW}, v{T}')
    a(f's_mov_b32 s{sMODE}, 0')
    a(f'v_lshlrev_b32 v{vL16}, 4, v{vL}')
    def kv_offsets():
        a(f'v_and_b32 v{T}, 31, v{vL}')
        a(f'v_lshrrev_b32 v{T+1}, 5, v{vL}')
        a(f'v_lshlrev_b32 v{T+2}, 4, v{T+1}')
        a(f'v_lshl_add_u32 v{vKO}, v{T}, 5, v{T+2}')
        a(f'v_and_b32 v{T+6}, 9, v{T}')
        a(f'v_bfe_u32 v{T+7}, v{T}, 1, 1')
        a(f'v_lshl_add_u32 v{T+6}, v{T+7}, 2, v{T+6}')
        a(f'v_bfe_u32 v{T+7}, v{T}, 2, 1')
        a(f'v_and_b32 v{T+8}, 1, v{T}')
        a(f'v_cmp_eq_u32 vcc, 1, v{T+8}')
        a(f'v_lshl_add_u32 v{T+6}, v{T+7}, 1, v{T+6}')
        a(f'v_add_u32 v{T+7}, 16, v{T+7}')
        a(f'v_cndmask_b32 v{T+7}, v{T+7}, 18, vcc')
        a(f'v_cmp_gt_u32 vcc, 16, v{T}')
        a(f'v_and_b32 v{T+9}, 26, v{T}')
        a(f'v_mov_b32 v{T+8}, {OOB}')
        a(f'v_cndmask_b32 v{T+6}, v{T+7}, v{T+6}, vcc')
        a(f'v_cmp_lt_u32 vcc, 16, v{T+9}')
        a(f'v_lshl_add_u32 v{T+6}, v{T+6}, 5, v{T+2}')
        a(f'v_bfe_u32 v{T+3}, v{vL}, 2, 3')
        a(f'v_cndmask_b32 v{vVO}, v{T+6}, v{T+8}, vcc')
    kv_offsets()
    a(f'v_and_b32 v{T+4}, 3, v{vL}')
    a(f'v_mul_u32_u24 v{vQR}, 1152, v{T+3}')
    a(f'v_mad_u32_u24 v{vQR}, v{T+4}, 36, v{vQR}')
    a(f'v_add_u32 v{vQO}, v{vQR}, v{T+2}')
    a(f's_mul_i32 s36, s2, {8*1152}')
    a(f's_lshl_b32 s37, s{sW}, 14')
    a(f's_add_u32 s37, s37, {WS_KM}')
    a(f's_lshl_b32 s38, s{sW}, 12')
    a(f's_add_u32 s38, s38, {WS_KR}')
    a(f's_mul_i32 s39, s{sW}, {32*640}')
    a(f's_add_u32 s39, s39, {WS_VT}')
    for t in range(8): a(f'v_accvgpr_write_b32 a{aQR+2*t+1}, 0')
    a.waitall()
    srd(a, 20, 14, WS_SIZE)
    st('karg')
    a.label('KF_START')
    def ldq(t):
        return [f'buffer_load_dword a{aQR+2*t}, v{vQR}, {WS}, s36 offen offset:{144*t+32}',
                f'buffer_load_dwordx4 {A(aQM+4*t,4)}, v{vQO}, {WS}, s36 offen offset:{144*t}']
    def ldk(p):
        L = []
        if p % 2 == 0:
            L += [f's_add_u32 s40, s37, {2048*p}',
                  f'buffer_load_dwordx4 {A(aKR+2*p,4)}, v{vL16}, {WS}, s38 offen offset:{512*p}']
        L += [f'buffer_load_dwordx4 {A(aKM+8*p+4*t,4)}, v{vKO}, {WS}, s40 offen offset:{2048*(p%2)+1024*t}' for t in range(2)]
        return L
    def ldv(p):
        return [f's_add_u32 s41, s39, {2560*p}'] + [f'buffer_load_dwordx4 {A(aV+16*p+4*g,4)}, v{vVO}, {WS}, s41 offen offset:{640*g}' for g in range(4)]
    NP0 = opt.get('np0', 3)
    for l in ldq(0) + ldk(0) + ldq(1) + ldv(0): a(l)
    for p in range(1, NP0):
        for l in ldk(p) + ldv(p): a(l)
    a(f's_mov_b64 s[{sBAD}:{sBAD+1}], 0')
    a(f'v_mov_b32 v{vIDX}, 0xdddddddd')
    a(f'v_mov_b32 v{vZ}, 0')
    a(f'v_mov_b32 v{vZ+1}, 0')
    a(f'v_and_b32 v{T}, 1, v{vL}')
    a(f'v_mul_u32_u24 v{vIDX2}, 0xaaaa, v{T}')
    a(f'v_add_u32 v{vIDX2}, 0x4444, v{vIDX2}')
    zero32 = lambda r: f'v_mfma_f32_32x32x4bf16_1k {V(r,32)}, {V(vZ,2)}, {V(vZ,2)}, 0'
    a(zero32(vO))
    for i in range(32, 36): a(f'v_mov_b32 v{vWA+i}, 0')
    a(f's_mul_i32 s42, s{sW}, 2560')
    a(f's_mul_i32 s43, s{sW}, 10240')
    a(f'v_add_u32 v{vOPW}, s42, v{vL16}')
    a(f'v_lshl_add_u32 v{vOPW8}, v{vL}, 3, s42')
    a(f'v_add_u32 v{vOPR}, s43, v{vL16}')
    a(f'v_lshl_add_u32 v{vOPR8}, v{vL}, 3, s43')
    a(f's_add_u32 s43, s43, {L_WP}')
    srd(a, 16, 4, 2048 * 1152)
    a(zero32(vWA))
    a(f'v_and_b32 v{T}, 31, v{vL}')
    a(f'v_lshrrev_b32 v{T+1}, 5, v{vL}')
    a(f'v_lshlrev_b32 v{T}, 4, v{T}')
    a(f's_movk_i32 s44, 1152')
    a(f'v_mad_u32_u24 v{vXO}, v{T+1}, s44, v{T}')
    a(f's_mul_i32 s45, s{sW}, 2304')
    a(f's_add_u32 s45, s45, s36')
    a(f's_mul_i32 s46, s{sW}, {81*2048}')
    a(f's_add_u32 s46, s46, {WS_WO}')
    a(f'v_lshrrev_b32 v{T}, 3, v{vL}')
    a(f'v_and_b32 v{T+1}, 6, v{T}')
    a(f'v_and_b32 v{T+2}, 7, v{vL}')
    a(f'v_xor_b32 v{T+2}, v{T+2}, v{T+1}')
    a(f'v_lshlrev_b32 v{T+2}, 4, v{T+2}')
    a(f'v_mad_u32_u24 v{vSD}, v{T}, s44, v{T+2}')
    a(f'v_and_b32 v{T+1}, 4, v{T}')
    a(f'v_add_u32 v{T}, v{T}, v{T+1}')
    a(f's_movk_i32 s44, 9216')
    a(f'v_mad_u32_u24 v{vSG}, v{T}, s44, v{T+2}')
    a(f's_lshl_b32 s47, s{sW}, 14')
    a(f's_add_u32 s47, s47, {L_ST}')
    a(f'v_bfe_u32 v{T}, v{vL}, 2, 3')
    a(f'v_lshrrev_b32 v{T+1}, 5, v{vL}')
    a(f'v_lshlrev_b32 v{T+1}, 10, v{T+1}')
    a(f'v_lshl_add_u32 v{T+1}, v{T}, 7, v{T+1}')
    a(f'v_and_b32 v{T}, 6, v{T}')
    a(f'v_lshl_add_u32 v{T+1}, v{T}, 4, v{T+1}')
    a(f'v_and_b32 v{T}, 3, v{vL}')
    a(f'v_lshl_add_u32 v{T+1}, v{T}, 3, v{T+1}')
    for t in range(4):
        a(f'v_xor_b32 v{vTA+t}, {32*t}, v{T+1}')
        a(f'v_add_u32 v{vTA+t}, s47, v{vTA+t}')
    a('s_and_b32 s48, s2, 7')
    a('s_lshr_b32 s31, s2, 3')
    a('s_lshl_b32 s49, s31, 2')
    a(f's_add_u32 s49, s49, s{sW}')
    a('s_mul_i32 s50, s48, 1152')
    a(f's_mul_i32 s51, s48, {576*1152}')
    a(f's_mul_i32 s52, s48, {4*WSTREAM}')
    a(f's_add_u32 s52, s52, {WS_W}')
    a(f's_mul_i32 s30, s{sW}, {WSTREAM}')
    a('s_add_u32 s30, s30, s52')
    a('s_lshl_b32 s28, s48, 9')
    a(f's_add_u32 s28, s28, {FL0}')
    a('s_lshl_b32 s29, s49, 2')
    a('s_add_u32 s29, s29, s28')
    a('s_mul_i32 s53, s31, 18')
    a(f'v_add_u32 v{T}, s53, v{vL}')
    a(f'v_lshlrev_b32 v{T}, 7, v{T}')
    a(f'v_cmp_gt_u32 vcc, 18, v{vL}')
    a(f'v_mov_b32 v{T+1}, {OOB}')
    a(f'v_lshlrev_b32 v{vFA}, 3, v{vL}')
    a(f'v_cndmask_b32 v{vPF}, v{T+1}, v{T}, vcc')
    for u in range(4):
        dyn = u in (1, 2)
        lo, hi = {0: (0, 0), 1: (0, 1), 2: (1, 2), 3: (2, 2)}[u]
        ptr = {0: 8, 1: 10, 2: 24}
        a(f's_add_u32 s53, s49, {128*u - 162*lo}')
        if u == 3: a('s_min_u32 s53, s53, 161')
        def sel(d, x_lo, x_hi):
            if x_lo == x_hi: a(f's_mov_b32 {d}, {x_lo}')
            elif isinstance(x_lo, int) and isinstance(x_hi, int) and max(x_lo, x_hi) > 64 and min(x_lo, x_hi) > 64:
                a(f's_mov_b32 {d}, {x_lo}'); a(f's_cselect_b32 {d}, {x_hi}, {d}')
            else: a(f's_cselect_b32 {d}, {x_hi}, {x_lo}')
        P = lambda ty: dict(add={0: 0, 1: 1024, 2: 324*1024}[ty], src='s51' if ty == 2 else 's50', sh=10 if ty == 2 else 11,
                            sa=8*1152 if ty == 2 else 16*9216, shh=16*1152 if ty == 2 else 4*9216, bs=32*1152 if ty == 2 else 32*9216, ts=18432 if ty == 2 else 36864)
        l, h = P(lo), P(hi)
        if dyn: a('s_cmp_ge_u32 s53, 162')
        sel(f's{64+4*u}', f's{ptr[lo]}', f's{ptr[hi]}')
        sel(f's{65+4*u}', f's{ptr[lo]+1}', f's{ptr[hi]+1}')
        a(f's_mov_b32 s{66+4*u}, {576*4608*2}')
        a(f's_mov_b32 s{67+4*u}, 0x20000')
        sel('s55', l['add'], h['add']); sel('s56', l['src'], h['src']); sel('s57', l['sh'], h['sh'])
        sel(f's{84+u}', l['sa'], h['sa']); sel(f's{88+u}', l['shh'], h['shh']); sel('s58', l['bs'], h['bs']); sel('s59', l['ts'], h['ts'])
        if u == 2:
            a('s_cselect_b64 vcc, -1, 0')
            a(f'v_cndmask_b32 v{vSX}, v{vSG}, v{vSD}, vcc')
        if dyn:
            a('s_cselect_b32 s54, 162, 0')
            a('s_sub_u32 s53, s53, s54')
        a('s_mul_i32 s60, s53, 57')
        a('s_lshr_b32 s60, s60, 9')
        a('s_mul_i32 s61, s60, 9')
        a('s_sub_u32 s61, s53, s61')
        a('s_mul_i32 s58, s58, s60')
        a('s_add_u32 s58, s58, s56')
        a('s_lshl_b32 s62, s61, 7')
        a(f's_add_u32 s{80+u}, s58, s62')
        a('s_lshl_b32 s60, s60, s57')
        a('s_add_u32 s60, s60, s55')
        a('s_add_u32 s60, s60, s52')
        a('s_lshr_b32 s62, s61, 1')
        a(f's_mul_i32 s62, s62, {WSTREAM}')
        a('s_and_b32 s63, s61, 1')
        a('s_lshl_b32 s63, s63, 2')
        a('s_cmp_eq_u32 s61, 8')
        a('s_cselect_b32 s62, 0, s62')
        a('s_cselect_b32 s63, 8, s63')
        a(f's_cselect_b32 s{96+u}, {WSTREAM}, s59')
        a('s_mul_i32 s63, s63, s59')
        a('s_add_u32 s60, s60, s62')
        a(f's_add_u32 s{92+u}, s60, s63')
    swv = [vSG, vSG, vSX, vSD]
    its = [(t, p) for p in range(6) for t in range(2)] + [(0, 6), (0, 7), (1, 6), (1, 7)]
    its += [(t, p) for t in range(2, 6) for p in range(8)]
    its += [(6, 0), (6, 1), (7, 0), (7, 1)] + [(t, p) for p in range(2, 8) for t in (6, 7)]
    last_of_tile = {t: max(i for i, x in enumerate(its) if x[0] == t) for t in range(8)}
    first_of_tile = {t: min(i for i, x in enumerate(its) if x[0] == t) for t in range(8)}
    last_of_pair = {p: max(i for i, x in enumerate(its) if x[1] == p) for p in range(8)}
    sc = Sched()
    MEM = ['P3', 'P0', 'P1', 'P2']
    MEM6 = ['P3', 'R', 'P0', 'P1', 'M0', 'P2']
    ALL = ['P3', 'R', 'P0', 'P1', 'M0', 'M1', 'P2']
    ids = {}
    def rec(key, text): return lambda: ids.__setitem__(key, a(text))
    L = sum([ldk(p) + ldv(p) for p in range(NP0, 8)], []) + sum([ldq(t) for t in range(2, 8)], [])
    L += [f'buffer_load_dwordx4 {V(vX+4*e,4)}, v{vXO}, s[16:19], s45 offen offset:{384*e}' for e in range(3)]
    it = sc.spread(0, ['P3', 'R', 'P0', 'P1', 'P2'], group_salu(L)) + 1
    D0 = opt.get('dma0', it); DS = opt.get('dmastep', 1); LAG = opt.get('lag', 8)
    assert D0 >= it
    NT = opt.get('nt', 'nt')
    unit_done = {}
    for u in range(4):
        for i in range(4):
            k = 4 * u + i; it = D0 + int(k * DS)
            pre = {0: f's_mov_b32 s54, s{80+u}', 1: f's_add_u32 s54, s{80+u}, s{84+u}', 2: f's_add_u32 s54, s{80+u}, s{88+u}', 3: f's_add_u32 s54, s54, s{84+u}'}[i]
            sc.put(it, 'M0' if DS >= 1 or k % 2 else 'R', pre, f's_add_u32 m0, s47, {4096*u+1024*i}')
            sc.put(it, 'M1' if DS >= 1 or k % 2 else 'X0', rec(('dma', u, i), f'buffer_load_dwordx4 v{swv[u]}, s[{64+4*u}:{67+4*u}], s54 offen {NT} lds' if not opt.get('nodma') else 's_nop 0'))
        it += LAG
        if u: it = max(it, unit_done[u - 1] + 1)
        tb = vRING
        sc.put(it, 'P3', lambda u=u: a.wait(ids[('dma', u, 3)]))
        sc.spread(it, MEM, [f'ds_read_b64_tr_b16 {V(tb+4*t+2*h,2)}, v{vTA+t} offset:{4096*u+2048*h}' for t in range(4) for h in range(2)], per=2)
        for t in range(4):
            sc.put(it + 1, MEM[t], f's_mov_b32 s55, s{92+u}' if t == 0 else f's_add_u32 s55, s55, s{96+u}',
                   rec(('swst', u, t), f'buffer_store_dwordx4 {V(tb+4*t,4)}, v{vL16}, {WS}, s55 offen {opt.get("swaux", SC1)}' if not opt.get('noswst') else 's_nop 0'))
        unit_done[u] = it + 1
    print('kf: swizzle units stored at', unit_done)
    def opw(t):
        o = vO + 16 * (t % 2); off = (t % 4) * 10240
        return [f'ds_write_b128 v{vOPW}, {V(o,4)} offset:{off}', f'ds_write_b128 v{vOPW}, {V(o+4,4)} offset:{off+1024}',
                f'ds_write_b64 v{vOPW8}, {V(o+8,2)} offset:{off+2048}']
    zero_at = set()
    for t in range(7):
        i0 = last_of_tile[t] + 1
        sc.spread(i0, ['P0', 'P1', 'P2'], opw(t))
        if t < 6:
            assert first_of_tile[t + 2] > i0 + 1
            sc.put(i0 + 1, 'P2', lambda: a.waitall(vm=False))
            sc.put(i0 + 1, 'X1', f'v_mfma_f32_32x32x8bf16_1k {V(vO+16*(t%2),16)}, {V(vZ,2)}, {V(vZ,2)}, 0')
            zero_at.add(i0 + 1)
    def fin_tail(F, G, half, pk):
        L = [f'v_rcp_f32 v{G}, v{F+9}',
             f'v_subrev_u32 v{G+2}, 0x33800000, v{F+9}',
             f'v_cmp_le_u32 vcc, 0x20000000, v{G+2}']
        if pk:
            L += [f'v_mov_b32 v{G+1}, v{G}'] + [f'v_pk_mul_f32 {V(F+2*i,2)}, {V(F+2*i,2)}, {V(G,2)}' for i in range(4)] + [f'v_mul_f32 v{F+8}, v{G}, v{F+8}']
        else: L += [f'v_mul_f32 v{F+i}, v{G}, v{F+i}' for i in range(9)]
        L += [f's_or_b64 s[{sBAD}:{sBAD+1}], s[{sBAD}:{sBAD+1}], vcc']
        L += [f'v_cvt_pk_bf16_f32 v{F+i}, v{F+2*i}, v{F+2*i+1}' for i in range(4)]
        L += [f'v_cvt_pk_bf16_f32 v{F+8}, v{F+8}, v{F+8}']
        L += [f'ds_write_b128 v{vKO}, {V(F,4)} offset:{L_AF+4096*half}', f'ds_write_b16 v{vVO}, v{F+8} offset:{L_AF+8192+512*half}']
        return L
    oprd = lambda s, b: [f'ds_read_b128 {V(b,4)}, v{vOPR} offset:{2560*s}', f'ds_read_b128 {V(b+4,4)}, v{vOPR} offset:{2560*s+1024}',
                         f'ds_read_b64 {V(b+8,2)}, v{vOPR8} offset:{2560*s+2048}']
    def fin_items():
        F, G = vF, vF + 10
        L = oprd(0, F) + oprd(1, G)
        for s in range(1, 4):
            for c, (lo, n) in enumerate(((0, 4), (4, 4), (8, 2))):
                L += [f'v_add_f32 v{F+i}, v{F+i}, v{G+i}' for i in range(lo, lo + n)]
                if s < 3: L.append(oprd(s + 1, G)[c])
        return L + fin_tail(F, G, 0, False)
    afw = [f'v_bfe_u32 v{T}, v{vL}, 2, 3', f'v_lshrrev_b32 v{T+1}, 5, v{vL}', f'v_lshl_add_u32 v{T}, v{T}, 1, v{T+1}',
           f'v_and_b32 v{T+1}, 3, v{vL}', f'v_lshlrev_b32 v{T}, 4, v{T}', f's_lshl_b32 s56, s{sW}, 10',
           f'v_lshl_add_u32 v{T+2}, v{T+1}, 8, v{T}', f'v_add_u32 v{vKO}, s56, v{T+2}',
           f's_lshr_b32 s56, s{sW}, 1', 's_lshl_b32 s56, s56, 8', f's_and_b32 s57, s{sW}, 1', 's_lshl_b32 s57, s57, 3', 's_add_u32 s56, s56, s57',
           f'v_lshl_add_u32 v{T+2}, v{T+1}, 1, v{T}', f'v_add_u32 v{vVO}, s56, v{T+2}']
    sc.spread(17, ['P3', 'R', 'P0', 'P1', 'P2'], afw)
    sc.put(33, 'P3', lambda: a.waitall(vm=False), 's_barrier')
    F0 = sc.spread(33, ['R', 'P0', 'P1', 'M0', 'M1', 'P2', 'X2'], fin_items(), per=opt.get('finper', 3))
    sc.put(F0 + 1, 'P3', lambda: a.waitall(vm=False), 's_barrier')
    assert F0 + 1 <= 40
    NL = opt.get('nl', 11)
    lds_src = {}
    def wo_dma(b, base, off):
        lds_src[b] = (base, off)
        return [[f's_add_u32 s53, s46, {2048*b}', f's_add_u32 m0, {base}, {off}', 's_nop 0', rec(('wdma', b, 0), f'buffer_load_dwordx4 v{vL16}, {WS}, s53 offen lds'),
                 rec(('wdma', b, 1), f'buffer_load_dwordx4 v{vL16}, {WS}, s53 offen offset:1024 lds')]]
    slots_l = [('s43', 2048 * i, D0 + 2 + 2 * i) for i in range(5)] + [('s47', 2048 * i, unit_done[i // 2] + i % 2) for i in range(8)]
    for k in range(NL):
        base, off, when = slots_l[k]
        sc.put(when, 'X2', *wo_dma(81 - NL + k, base, off)[0])
    NB = 81 - NL
    blkreg = {}
    def wo_ld(b, reg, f):
        blkreg[b] = (reg, f)
        return [[f's_add_u32 s53, s46, {2048*b}', f'buffer_load_dwordx4 {V(reg,4,f)}, v{vL16}, {WS}, s53 offen'],
                [f'buffer_load_dwordx4 {V(reg+4,4,f)}, v{vL16}, {WS}, s53 offen offset:1024']]
    def wo_mm(b):
        t, dt = divmod(b, 9)
        return f'v_smfmac_f32_16x16x64_bf16 {V(vWA+4*dt,4)}, {V(vAF+4*(t%2),4)}, {V(blkreg[b][0],8,blkreg[b][1])}, v{vIDX2}'
    def af_rd(t): return f'ds_read_b128 {V(vAF+4*(t%2),4)}, v{vL16} offset:{L_AF+1024*t}'
    order = ['P3', 'R', 'P0', 'X0', 'P1', 'M0', 'M1', 'P2', 'X1', 'X2']
    W0 = opt.get('wo0', 27)
    pool = [(vRING + 8 * i, 'v', (W0, 0)) for i in range(2, 7)] + [(aQM, 'a', (W0, 0))]
    pool += [(vRING + 8 * i, 'v', (unit_done[3] + 1, 0)) for i in (0, 1, 7)]
    pool += [(aQM + 8, 'a', (last_of_tile[3], 0)), (aQM + 16, 'a', (last_of_tile[5], 0))]
    for p in range(8):
        lp = last_of_pair[p]
        pool += [(aKM + 8 * p, 'a', (lp - 1, 7)), (aV + 16 * p, 'a', (lp, 5)), (aV + 16 * p + 8, 'a', (lp + 1, 1))]
    mm_at = {}
    it = F0 + 1; b = 0
    MMR = opt.get('mmr', 2)
    while b < 36:
        xs = ['X0', 'X1', 'X2'][:MMR] if it not in zero_at else ['X0']
        if it == F0 + 1: xs = xs[1:]
        for x in xs:
            if b < 36: mm_at[b] = (it, x); b += 1
        it += 1
    print('kf: first-half Wo from', F0 + 1, 'to', it - 1)
    nb = 0; pend = []
    busy = {k[0] for k in sc.d if k[1] == 'X2' and any(isinstance(x, str) and 's53' in x for x in sc.d[k])}
    for it in range(W0, 64):
        for si, sl in enumerate(order):
            for b, (i2, s2) in mm_at.items():
                if (i2, s2) == (it, sl):
                    pool.append((*blkreg[b], (it, si + 1)))
                    sc.put(it, sl, lambda b=b: a(wo_mm(b)))
            if sl in MEM6:
                if not pend and nb < NB and not (sl == 'P2' and it in busy):
                    av = sorted([x for x in pool if x[2] <= (it, si)], key=lambda x: x[2])
                    if av:
                        x = av[0]; pool.remove(x); pend = wo_ld(nb, x[0], x[1]); nb += 1
                if pend: sc.put(it, sl, *pend.pop(0))
    print('kf: Wo blocks issued in loop:', nb, 'of', NB)
    sc.put(F0 + 1, 'R', af_rd(0))
    for t in range(1, 4): sc.put(mm_at[9 * (t - 1) + 3][0], 'M1', af_rd(t))
    S0 = opt.get('s0', 44)
    sc.put(S0, 'M1', lambda: a.wait(ids[('swst', 3, 3)]), f'v_mov_b32 v{vFD}, 1', *flag(vFD, 29))
    fl0 = f'buffer_load_dwordx2 {V(vFD,2)}, v{vFA}, {WS}, s28 offen {SC1}'
    sc.put(S0 + 7, 'M1', fl0)
    touch = lambda s: [f's_add_u32 s56, s30, {73728*s}', f'buffer_load_dword v{vFA}, v{vPF}, {WS}, s56 offen']
    sc.put(S0 + 11, 'M1', lambda: spin_check('KF_S0', fl0, [f'v_and_b32 v{vFD}, v{vFD}, v{vFD+1}', f'v_cmp_ne_u32 vcc, 1, v{vFD}']))
    tch = lambda s, r: [] if opt.get('notouch') else [f's_add_u32 s56, s30, {73728*s}', f'buffer_load_dword v{r}, v{vPF}, {WS}, s56 offen']
    sc.put(S0 + 12, 'M1', *tch(0, vFD))
    sc.put(S0 + 14, 'M1', *tch(1, vFD + 1))
    def Pm(i, g):
        t, p = its[i]; buf = vS + 32 * (i % 2)
        return f'v_smfmac_f32_32x32x32_bf16 {V(vO+16*(t%2),16)}, {A(aV+16*p+4*g,4)}, {V(buf+8*g,8)}, v{vIDX}'
    def Rm(i):
        t, p = its[i]; buf = vS + 32 * (i % 2)
        return f'v_mfma_f32_32x32x4bf16_1k {V(buf,32)}, {A(aKR+2*p,2)}, {A(aQR+2*t,2)}, 0'
    def Mm(i, h):
        t, p = its[i]; buf = vS + 32 * (i % 2) + 16 * h
        return f'v_mfma_f32_32x32x16_bf16 {V(buf,16)}, {A(aKM+8*p+4*h,4)}, {A(aQM+4*t,4)}, {V(buf,16)}'
    a.tag = 'kf pre'
    st('setup')
    a(Rm(0)); a(Mm(0, 0)); a(Mm(0, 1))
    for it in range(64):
        a.tag = f'kf it{it}'
        if it % opt.get('tsstep', 8) == 0: st(f'it{it}')
        buf = vS + 32 * (it % 2)
        e = iter(range(32))
        def E(n):
            for _ in range(n):
                i = next(e); a(f'v_exp_f32 v{buf+i}, v{buf+i}')
        nx = it + 1 < 64
        E(2)
        if it: a(Pm(it - 1, 3))
        sc.run(a, it, 'P3'); E(3)
        if nx: a(Rm(it + 1))
        sc.run(a, it, 'R'); E(8)
        a(Pm(it, 0)); sc.run(a, it, 'P0'); E(3); sc.run(a, it, 'X0'); E(2)
        a(Pm(it, 1)); sc.run(a, it, 'P1'); E(3)
        if nx: a(Mm(it + 1, 0))
        sc.run(a, it, 'M0'); E(3)
        if nx: a(Mm(it + 1, 1))
        sc.run(a, it, 'M1'); E(3)
        a(Pm(it, 2)); sc.run(a, it, 'P2'); E(3); sc.run(a, it, 'X1'); E(2); sc.run(a, it, 'X2')
    assert not sc.d, sc.d.keys()
    a.tag = 'kf tail'
    st('loopend')
    for x in pend:
        for l in x: a(l)
    a(f'v_add_u32 v{vQO}, s43, v{vL16}')
    a(Pm(63, 3))
    rest = [(x[0], x[1]) for x in pool] + [(aKR, 'a'), (aKR + 8, 'a'), (aQM + 24, 'a')] + [(vS + 40 + 8 * i, 'v') for i in range(3)]
    while nb < NB:
        r, f = rest.pop(0)
        for x in wo_ld(nb, r, f):
            for l in x: a(l)
        nb += 1
    a(f'v_add_u32 v{vFA}, s47, v{vL16}')
    a(f'v_lshrrev_b32 v{T+10}, 4, v{vL}')
    a(f'v_and_b32 v{T+11}, 15, v{vL}')
    a(f'v_mul_u32_u24 v{T+10}, {2*2336}, v{T+10}')
    a(f'v_lshl_add_u32 v{T+10}, v{T+11}, 2, v{T+10}')
    a(f's_mul_i32 s53, s{sW}, 576')
    a(f'v_add_u32 v{T+10}, s53, v{T+10}')
    a(f'v_add_u32 v{T+11}, 2336, v{T+10}')
    a(f'v_and_b32 v{T+12}, 31, v{vL}')
    a(f'v_lshrrev_b32 v{T+13}, 5, v{vL}')
    a(f'v_mul_u32_u24 v{T+13}, 2336, v{T+13}')
    a(f'v_lshl_add_u32 v{T+12}, v{T+12}, 5, v{T+13}')
    for l in opw(7): a(l)
    a(f's_mul_i32 s53, s{sW}, {2*2336}')
    a(f'v_add_u32 v{T+12}, s53, v{T+12}')
    a(f's_lshl_b32 s54, s{sW}, 2')
    a(f'v_mov_b32 v{T+13}, s54')
    a.waitall(vm=False)
    a('s_barrier')
    st('bar1')
    for s in range(4):
        for l in oprd(s, vS + 10 * s): a(l)
    for s in (0, 2):
        for i in range(5): a(f'v_pk_add_f32 {V(vS+10*s+2*i,2)}, {V(vS+10*s+2*i,2)}, {V(vS+10*s+10+2*i,2)}')
    for i in (4, 0, 1, 2, 3): a(f'v_pk_add_f32 {V(vS+2*i,2)}, {V(vS+2*i,2)}, {V(vS+20+2*i,2)}')
    for l in fin_tail(vS, vS + 10, 1, True): a(l)
    a(f's_cmp_lg_u64 s[{sBAD}:{sBAD+1}], 0')
    a('s_cselect_b32 s53, 1, 0')
    a(f'v_mov_b32 v{T+4}, s53')
    a(f'ds_write_b32 v{T+13}, v{T+4} offset:{L_BAD}')
    XU = vS + 16
    for e in range(12):
        a(f'v_lshlrev_b32 v{XU+2*e}, 16, v{vX+e}')
        a(f'v_and_b32 v{XU+2*e+1}, 0xffff0000, v{vX+e}')
    a.waitall(vm=False)
    a('s_barrier')
    a(af_rd(4))
    a(f'ds_read_b128 {V(T,4)}, v{vZ} offset:{L_BAD}')
    a(af_rd(5))
    st('fin')
    a.wait(ids[('wdma', 80, 1)]) if NL else None
    ql = list(range(NB, 81))
    for b in range(36, 81):
        a(wo_mm(b))
        if b == 38:
            a(f'v_or3_b32 v{T}, v{T}, v{T+1}, v{T+2}')
            a(f'v_or_b32 v{T}, v{T}, v{T+3}')
        if b == 39: a(f'v_readfirstlane_b32 s53, v{T}')
        if b == 40:
            a(f's_andn2_b32 s53, s53, s{sMODE}')
            a('s_cbranch_scc1 KF_FALLBACK')
        if ql and b > 40 and blkreg[b][1] == 'a':
            c = ql.pop(0); blkreg[c] = blkreg[b]; base, off = lds_src[c]
            for h in range(2): a(f'ds_read_b128 {V(blkreg[c][0]+4*h,4,blkreg[c][1])}, v{vQO if base == "s43" else vFA} offset:{off+1024*h}')
        if b % 9 == 8 and b // 9 + 2 <= 8: a(af_rd(b // 9 + 2))
    st('wo')
    if opt.get('tsstep'): st.flush(vF + 16, final=False); st.on = False
    RING = 24
    vACC, vB, vR, vG, vPK = 0, 96, 128, 224, 232
    vHO, vHW, vHW8, vPO, vI0, vI1, vF1, vF2 = 242, 243, 244, 245, 246, 247, 248, 249
    seq = [(ft, ks, gu) for ks in range(18) for ft in range(2) for gu in range(2)]
    seq += [(ft, ks, gu) for ft in range(2, 9) for ks in range(18) for gu in range(2)]
    addr = [(ft * 18 + ks) * 2 + gu for ft, ks, gu in seq] + list(range(324, 486))
    nld = 0; wid = {}; curbase = None
    WA = opt.get('waux', '')
    def wload():
        nonlocal nld, curbase
        if nld >= 486: return False
        f = addr[nld]
        sreg = 57 if (nld < 72 and seq[nld][0] == 1) else 58
        if curbase is None: curbase = {}
        if curbase.get(sreg) != f // 4:
            curbase[sreg] = f // 4; a(f's_add_u32 s{sreg}, s30, {4096*(f//4)}')
        wid[nld] = a(f'buffer_load_dwordx4 {V(vR+4*(nld%RING),4)}, v{vL16}, {WS}, s{sreg} offen offset:{1024*(f%4)} {WA}')
        nld += 1
        return True
    for _ in range(4): wload()
    for dt in range(9):
        a(f'v_add_f32 v{vWA+4*dt}, v{vWA+4*dt}, v{vWA+4*dt+1}')
        a(f'v_add_f32 v{vWA+4*dt+2}, v{vWA+4*dt+2}, v{vWA+4*dt+3}')
        if dt % 2 == 1:
            for k in range(2): a(f'ds_write2_b32 v{T+10+k}, v{vWA+4*dt-4+2*k}, v{vWA+4*dt+2*k} offset0:{16*dt-16} offset1:{16*dt}')
    for k in range(2): a(f'ds_write_b32 v{T+10+k}, v{vWA+32+2*k} offset:512')
    H = vS + 40; SU = T + 4
    for i in range(4): a(f'v_mov_b32 v{SU+i}, 0')
    a('s_mov_b32 s54, 0x00ffffff'); a('s_mov_b32 s55, 0x00ffffff')
    a.waitall(vm=False)
    a('s_barrier')
    a('s_mov_b64 exec, s[54:55]')
    for e in range(3):
        for k in range(2): a(f'ds_read_b128 {V(H+8*e+4*k,4)}, v{T+12} offset:{768*e+16*k}')
    for i in range(12):
        a(f'v_pk_add_f32 {V(H+2*i,2)}, {V(H+2*i,2)}, {V(XU+2*i,2)}')
        a(f'v_pk_add_f32 {V(SU,2)}, {V(SU,2)}, {V(H+2*i,2)}')
    def red32(r):
        a('s_mov_b64 exec, -1')
        a(f'v_add_f32 v{r}, v{r}, v{r+1}')
        for m in ('quad_perm:[1,0,3,2]', 'quad_perm:[2,3,0,1]', 'row_half_mirror', 'row_mirror'):
            wload()
            a(f'v_add_f32_dpp v{r}, v{r}, v{r} {m} row_mask:0xf bank_mask:0xf')
        a(f'v_mov_b32 v{r+1}, v{r}')
        wload()
        a(f'v_permlane16_swap_b32 v{r+1}, v{r}')
        a(f'v_add_f32 v{r}, v{r}, v{r+1}')
        a('s_mov_b64 exec, s[54:55]')
    red32(SU)
    a(f'v_mul_f32 v{SU}, {fbits(-1/576)}, v{SU}')
    a(f'v_mov_b32 v{SU+1}, v{SU}')
    for i in range(12):
        a(f'v_pk_add_f32 {V(XU+2*i,2)}, {V(H+2*i,2)}, {V(SU,2)}')
        a(f'v_pk_fma_f32 {V(SU+2,2)}, {V(XU+2*i,2)}, {V(XU+2*i,2)}, {V(SU+2,2)}')
    red32(SU + 2)
    a(f'v_mov_b32 v{SU}, {fbits(EPS)}')
    a(f'v_fmac_f32 v{SU}, {fbits(1/576)}, v{SU+2}')
    a(f'v_rsq_f32 v{SU}, v{SU}')
    a(f's_add_u32 s53, s45, {WS_HN}')
    a(f'v_mul_f32 v{SU}, {fbits(ALPHA)}, v{SU}')
    a(f'v_mov_b32 v{SU+1}, v{SU}')
    for e in range(3):
        for i in range(4 * e, 4 * e + 4): a(f'v_pk_mul_f32 {V(XU+2*i,2)}, {V(XU+2*i,2)}, {V(SU,2)}')
        for i in range(4 * e, 4 * e + 4): a(f'v_cvt_pk_bf16_f32 v{vX+i}, v{XU+2*i}, v{XU+2*i+1}')
        hst = a(f'buffer_store_dwordx4 {V(vX+4*e,4)}, v{vXO}, {WS}, s53 offen offset:{384*e} {SC1}')
    for e in range(3):
        for k in range(2): a(f'ds_write_b128 v{T+12}, {V(H+8*e+4*k,4)} offset:{768*e+16*k}')
    a('s_mov_b64 exec, -1')
    st('ln')
    T = vS
    vHO1, vN0 = vXO, vG
    a(f's_lshr_b32 s37, s{sW}, 1')
    a(f's_and_b32 s38, s{sW}, 1')
    a(f'v_lshrrev_b32 v{T}, 3, v{vL}')
    a(f'v_bfe_u32 v{T+1}, v{vL}, 4, 1')
    a(f'v_lshl_add_u32 v{T+1}, s38, 2, v{T+1}')
    a(f'v_and_b32 v{T+2}, 7, v{vL}')
    a(f'v_xor_b32 v{T+1}, v{T+1}, v{T+2}')
    a(f'v_mul_u32_u24 v{T}, 1152, v{T}')
    a(f'v_lshl_add_u32 v{vHO}, v{T+1}, 4, v{T}')
    a(f'v_xor_b32 v{T}, 32, v{vHO}')
    a(f'v_add_u32 v{vHO1}, {8*1152}, v{T}')
    a(f's_lshl2_add_u32 s35, s31, s{sW}')
    a(f's_mul_i32 s35, s35, {16*1152}')
    a(f's_add_u32 s35, s35, {WS_HN}')
    a(f's_lshl_b32 s39, s{sW}, 14')
    a(f's_add_u32 s39, s39, {L_IMG}')
    a(f'v_add_u32 v{vHW}, s39, v{vL16}')
    a('s_lshl_b32 s39, s37, 12')
    a('s_lshl3_add_u32 s39, s38, s39')
    a(f's_add_u32 s39, s39, {L_IMG + 65536}')
    a(f'v_add_u32 v{vHW8}, s39, v{vL16}')
    a(f'v_add_u32 v{vI0}, {L_IMG}, v{vL16}')
    a(f'v_add_u32 v{vI1}, {L_IMG + 65536}, v{vL16}')
    a(f'v_bfe_u32 v{T}, v{vL}, 2, 2')
    a(f'v_mul_u32_u24 v{T}, 73728, v{T}')
    a(f'v_lshrrev_b32 v{T+1}, 4, v{vL}')
    a(f'v_lshl_add_u32 v{T}, v{T+1}, 6, v{T}')
    a(f'v_and_b32 v{T+1}, 3, v{vL}')
    a(f'v_lshl_add_u32 v{vPO}, v{T+1}, 4, v{T}')
    a(f's_mul_i32 s41, s{sW}, {9*2048}')
    a(f's_add_u32 s41, s41, {WS_P}')
    a(f's_mul_i32 s40, s31, {8*73728}')
    a('s_add_u32 s40, s40, s41')
    a('s_lshl_b32 s44, s48, 8')
    a('s_add_u32 s40, s40, s44')
    a('s_mul_i32 s44, s2, 73728')
    a('s_add_u32 s44, s44, s41')
    a(f's_mov_b32 s42, {fbits(-GELU_C)}')
    a('s_lshl_b32 s49, s2, 2')
    a(f's_add_u32 s49, s49, s{sW}')
    a('s_lshl_b32 s49, s49, 7')
    a(f's_add_u32 s50, s49, {FL2}')
    a(f's_add_u32 s49, s49, {FL1}')
    a(f'v_and_b32 v{T+1}, 7, v{vL}')
    a(f'v_lshlrev_b32 v{vF1}, 7, v{T+1}')
    a(f'v_lshlrev_b32 v{vF2}, 9, v{T+1}')
    a(f's_lshl2_add_u32 s51, s31, s{sW}')
    a('s_lshl_b32 s51, s51, 10')
    a(f's_add_u32 s51, s51, {FL1}')
    a('s_lshl_b32 s52, s31, 5')
    a(f's_add_u32 s52, s52, s{sW}')
    a('s_lshl_b32 s52, s52, 7')
    a(f's_add_u32 s52, s52, {FL2}')
    a(f's_lshl_b32 s37, s{sW}, 11')
    a(f'v_mov_b32 v{vFD+1}, 1')
    a(f'v_bfe_u32 v{T}, v{vL}, 1, 3')
    a(f'v_lshrrev_b32 v{T+1}, 4, v{vL}')
    a(f'v_xor_b32 v{T}, v{T}, v{T+1}')
    a(f'v_and_b32 v{T+1}, 3, v{vL}')
    a(f'v_lshlrev_b32 v{T+1}, 7, v{T+1}')
    a(f'v_lshl_add_u32 v{T}, v{T}, 4, v{T+1}')
    a(f'v_bfe_u32 v{T+1}, v{vL}, 2, 2')
    a(f'v_lshl_add_u32 v{T}, v{T+1}, 10, v{T}')
    a(f'v_add_u32 v{vN0}, {L_IMG}, v{T}')
    a(f'v_xor_b32 v{vN0+1}, 64, v{vN0}')
    a(f'v_add_u32 v{vN0+2}, 65536, v{vN0}')
    a(f'v_add_u32 v{vN0+3}, 65536, v{vN0+1}')
    a.wait(hst)
    for l in flag(vFD + 1, 49): a(l)
    st('hnack')
    while nld < RING - 1: wload()
    fl1 = f'buffer_load_dword v{vFD}, v{vF1}, {WS}, s51 offen {SC1}'
    a(fl1)
    spin_check('KF_S1', fl1, [f'v_cmp_ne_u32 vcc, 1, v{vFD}'])
    st('seam1')
    def B(ks, tt):
        i = 4 * ks + tt
        return A(4 * i, 4) if i < 64 else V(vB + 4 * (i - 64), 4)
    hid = {}
    def hload(e):
        kp, o = divmod(e, 2)
        return [f's_add_u32 m0, s37, {L_IMG + 8192*kp + 1024*o - 128*kp}', 's_nop 0',
                lambda: hid.__setitem__(e, a(f'buffer_load_dwordx4 v{(vHO, vHO1)[o]}, {WS}, s35 offen offset:{128*kp} {SC1} lds'))]
    content = {}
    def brd(kind, ks):
        def one(tt):
            content[(ks, tt)] = kind
            if kind == 'H':
                o = 4096 * ks + 1024 * tt
                a(f'ds_read_b128 {B(ks,tt)}, v{vI0 if o < 65536 else vI1} offset:{o & 65535}')
            else:
                o = 8192 * (ks // 2) + 4096 * (tt // 2) + 512 * (tt % 2)
                a(f'ds_read_b128 {B(ks,tt)}, v{vN0 + ks % 2 + 2 * (o >> 16)} offset:{o & 65535}')
        return [(lambda tt=tt: one(tt)) for tt in range(4)]
    T = vG
    gelu_done = set()
    def gelu(ft):
        buf = vACC + 32 * (ft % 3); C = []
        for tt in range(4):
            g = buf + 4 * tt; u = buf + 16 + 4 * tt; t = T + 4 * (tt % 2)
            for h in range(2):
                C.append([f'v_fma_f32 v{t+2*h+i}, -v{g+2*h+i}, v{g+2*h+i}, s42' for i in range(2)])
                C.append([f'v_mul_f32 v{t+2*h+i}, v{t+2*h+i}, v{g+2*h+i}' for i in range(2)])
            for i in range(4): C.append([f'v_exp_f32 v{t+i}, v{t+i}'])
            for h in range(2): C.append([f'v_add_f32 v{t+2*h+i}, 1.0, v{t+2*h+i}' for i in range(2)])
            for i in range(4): C.append([f'v_rcp_f32 v{t+i}, v{t+i}'])
            for h in range(2): C.append([f'v_mul_f32 v{g+2*h+i}, v{g+2*h+i}, v{u+2*h+i}' for i in range(2)])
            for h in range(2): C.append([f'v_mul_f32 v{t+2*h+i}, v{t+2*h+i}, v{g+2*h+i}' for i in range(2)])
            C.append([f'v_cvt_pk_bf16_f32 v{vPK+2*tt+h}, v{t+2*h}, v{t+2*h+1}' for h in range(2)])
            if ft < 8: C.append([f'ds_write_b64 v{vHW}, {V(vPK+2*tt,2)} offset:{4096*(ft//2)+1024*tt+8*(ft%2)}'])
            else: C.append([f'ds_write_b64 v{vHW8}, {V(vPK+2*tt,2)} offset:{1024*tt}'])
        C[-1] = C[-1] + [lambda: gelu_done.add(ft)]
        return C
    def run(chunk):
        for x in chunk:
            if callable(x): x()
            else: a(x)
    ncons = 0
    fill = []
    def group(accs, ks, first):
        nonlocal ncons
        fr = V(vR + 4 * (ncons % RING), 4)
        for tt in range(4):
            assert content[(ks, tt)] == ('hn' if ncons < 324 else 'H'), (ncons, ks, tt)
            a(f'v_mfma_f32_16x16x32_bf16 {V(accs+4*tt,4)}, {fr}, {B(ks,tt)}, {0 if first else V(accs+4*tt,4)}')
            if tt == 0 and wload(): continue
            if tt == 3 and ncons + 1 in wid: a.wait(wid[ncons + 1])
            if fill: run(fill.pop(0))
        ncons += 1
    lbar = [lambda: a.waitall(vm=False), 's_barrier']
    H0 = opt.get('h0', 8)
    for ks in range(H0): run(hload(ks))
    a.wait(hid[1]); a('s_barrier')
    run(brd('hn', 0))
    st('hn0')
    tgt = vFD
    for n, (ft, ks, gu) in enumerate(seq):
        a.tag = f'kf ft{ft}'
        if n < 72:
            if n % 4 == 0:
                assert not fill
                if ks + 1 < 18:
                    if ks % 2 == 1: fill.append([lambda ks=ks: a.wait(hid[min(ks + 2, 17)]), 's_barrier'])
                    fill += [[x] for x in brd('hn', ks + 1)]
                if ks + H0 < 18: fill.append(hload(ks + H0))
                if ks == 12: fill.append(tch(2, vFD))
        elif ks == 0 and gu == 0:
            if ft in (2, 3, 5, 7, 8): st(f'f{ft}')
            if ft == 2: fill += [lbar] + gelu(0) + gelu(1)
            else:
                assert ft - 3 in gelu_done
                fill += [[]] * max(0, 3 - len(fill)) + gelu(ft - 1)
            if ft % 2 == 0: fill.insert(1, tch(ft // 2 + 2, vFD))
        if ft == 8 and ks == 14 and gu == 0:
            assert not fill, len(fill)
            fill += [lbar] + [[x] for k in range(6) for x in brd('H', k)]
        group(vACC + 32 * (ft % 3) + 16 * gu, ks, ks == 0)
    pst = {}
    def epi(dt):
        acc = vACC + 16 * (dt % 2); C = []
        for p in range(2):
            for k in range(2):
                tt = 2 * p + k
                C.append([f'v_cvt_pk_bf16_f32 v{vPK+4*p+2*k+h}, v{acc+4*tt+2*h}, v{acc+4*tt+2*h+1}' for h in range(2)])
            C.append([f's_add_u32 s41, s40, {4*73728*p + 2048*dt}',
                      lambda p=p: pst.__setitem__(dt, a(f'buffer_store_dwordx4 {V(vPK+4*p,4)}, v{vPO}, {WS}, s41 offen {opt.get("paux", SC1)}' if not opt.get('nostore') else 's_nop 0'))])
        return C
    preg = lambda i: 32 + 4 * i if i < 16 else vR + 4 * (i - 16)
    def pld(i): return ([f's_add_u32 s45, s44, {4096*(i//4)}'] if i % 4 == 0 else []) + [f'buffer_load_dwordx4 {V(preg(i),4)}, v{vL16}, {WS}, s45 offen offset:{1024*(i%4)} {SC1}']
    fl2 = f'buffer_load_dword v{vFD}, v{vF2}, {WS}, s52 offen {SC1}'
    def pub(dt, val): return [lambda: a.wait(pst[dt]), f'v_mov_b32 v{vFD+1}, {val}'] + flag(vFD + 1, 50)
    def chk2(val): return [lambda: spin_check(f'KF_S2{val}', fl2, [f'v_cmp_gt_u32 vcc, {val}, v{vFD}'])]
    PIPE = opt.get('pipe2', 1)
    ev = {}
    if PIPE:
        ev = {(5, 10): [pub(3, 1)], (6, 4): [[fl2]], (7, 0): [chk2(1)] + [pld(i) for i in range(8)],
              (7, 10): [pub(5, 2)], (8, 2): [[fl2]], (8, 15): [chk2(2)] + [pld(i) for i in range(8, 12)]}
    for dt in range(9):
        a.tag = f'kf dt{dt}'
        st(f'd{dt}') if dt in (0, 1, 4, 7) else None
        if dt == 0:
            g = gelu(8); r = [[x] for k in range(6, 16) for x in brd('H', k)]
            g = [g[i] + g[i + 1] for i in range(0, len(g), 2)]
            while g or r:
                fill.append((r.pop(0) if r else []) + (g.pop(0) if g else []))
            fill.append(lbar + brd('H', 16) + brd('H', 17))
        else:
            fill += [[]] * 3 + epi(dt - 1)
        for ks in range(18):
            fill += ev.get((dt, ks), [])
            group(vACC + 16 * (dt % 2), ks, ks == 0)
        assert not fill, (dt, len(fill))
    a.tag = 'kf red'
    vH, vD, vA, vOo, T = vR + 8, vR + 28, vR + 48, vR + 56, vR + 60
    a(f'v_bfe_u32 v{T}, v{vL}, 4, 1')
    a(f'v_and_b32 v{T+1}, 3, v{vL}')
    a(f'v_lshl_add_u32 v{T}, v{T}, 2, v{T+1}')
    a(f'v_and_b32 v{T+1}, 12, v{vL}')
    a(f'v_and_b32 v{T+2}, 32, v{vL}')
    a(f'v_lshl_add_u32 v{T+3}, v{T+1}, 1, v{T+2}')
    a(f'v_mul_u32_u24 v{T+4}, 2336, v{T}')
    a(f'v_mul_u32_u24 v{T}, 1152, v{T}')
    for c in epi(8): run(c)
    a(f'v_add_u32 v{vOo}, v{T}, v{T+3}')
    a(f'v_lshl_add_u32 v{vOo+1}, v{T+2}, 25, v{vOo}')
    a(f'v_lshl_add_u32 v{T+4}, v{T+3}, 1, v{T+4}')
    a(f's_lshl_b32 s37, s{sW}, 9')
    a(f'v_add_u32 v{T+5}, s37, v{T+4}')
    a(f's_lshl_b32 s37, s{sW}, 6')
    a(f'v_add_u32 v{T+4}, s37, v{T+4}')
    for u in range(4): a(f'ds_read_b128 {V(vH+4*u,4)}, v{T+5} offset:{128*u}')
    a(f'ds_read_b128 {V(vH+16,4)}, v{T+4} offset:2048')
    srd(a, 16, 26, 2048 * 1152)
    a(f's_lshl_b32 s37, s{sW}, 8')
    a('s_add_u32 s37, s37, s36')
    a(f's_lshl_b32 s38, s{sW}, 5')
    a('s_add_u32 s38, s38, s36')
    a(f'v_and_b32 v{T}, 1, v{vL}')
    a(f'v_lshlrev_b32 v{T}, 4, v{T}')
    a(f'v_mov_b32 v{T+1}, 0x3f80')
    a(f'v_lshlrev_b32 v{T}, v{T}, v{T+1}')
    a(f'v_bfe_u32 v{T+1}, v{vL}, 1, 3')
    for i in range(8): a(f'v_cmp_eq_u32 s[{64+2*i}:{65+2*i}], {i}, v{T+1}')
    for i in range(8): a(f'v_cndmask_b32 v{vA+i}, 0, v{T}, s[{64+2*i}:{65+2*i}]')
    a(f's_mov_b32 s39, {fbits(1/ALPHA**2)}')
    def red(u):
        for i in range(4 * u, min(4 * u + 4, 18)):
            dt = i // 2; d = V(vD + 4 * u, 4)
            a(f'v_mfma_f32_16x16x32_bf16 {d}, {V(vA+4*(dt%2),4)}, {V(preg(i),4)}, {d if i % 4 else 0}')
    def outp(u):
        for r in range(4): a(f'v_fmac_f32 v{vH+4*u+r}, s39, v{vD+4*u+r}')
        for h in range(2): a(f'v_cvt_pk_bf16_f32 v{vH+4*u+h}, v{vH+4*u+2*h}, v{vH+4*u+2*h+1}')
        if u < 4: a(f'buffer_store_dwordx2 {V(vH+4*u,2)}, v{vOo}, s[16:19], s37 offen offset:{64*u}')
        else: a(f'buffer_store_dwordx2 {V(vH+4*u,2)}, v{vOo+1}, s[16:19], s38 offen offset:1024')
    st('done')
    run(pub(8, 3))
    st('pack')
    u0 = 3 if PIPE else 0
    for u in range(u0): red(u)
    for u in range(u0): outp(u)
    a(fl2)
    run(chk2(3))
    st('seam2')
    for i in range(4 * u0, 18): run(pld(i))
    for u in range(u0, 5): red(u)
    for u in range(u0, 5): outp(u)
    st.flush(T)
    a.label('KF_END')
    a('s_endpgm')
    for name, load, cmps in ool:
        a.label(f'{name}_SPIN')
        a.vm = []; a.lg = []
        a('s_mov_b32 s3, 0x200000')
        a.label(f'{name}_L')
        a(load)
        a('s_sub_u32 s3, s3, 1')
        a.forcewait()
        a(f's_cbranch_scc1 {name}_OK')
        for c in cmps: a(c)
        a('s_nop 0')
        a(f's_cbranch_vccnz {name}_L')
        a(f's_branch {name}_OK')
    a.tag = 'kf fb'
    T = vF
    a.label('KF_FALLBACK')
    a.forcewait(); a.fence()
    kv_offsets()
    a(f'v_add_u32 v{vQO}, v{vQR}, v{T+2}')
    for p in range(8):
        for l in ldk(p): a(l)
    a(f's_lshl_b32 s53, s{sW}, 8')
    a(f'v_lshl_add_u32 v{T+10}, v{vL}, 2, s53')
    a('s_mov_b32 s54, s36')
    a('s_mov_b32 s55, 0')
    a.forcewait()
    a.label('KF_FB_LOOP')
    a(f'buffer_load_dwordx4 {V(vO,4)}, v{vQO}, {WS}, s54 offen')
    a(f'buffer_load_dword v{vO+4}, v{vQR}, {WS}, s54 offen offset:32')
    a(f'v_mov_b32 v{vO+5}, 0')
    a(f'v_mov_b32 v{T}, 0xff800000')
    for p in range(8):
        a(f'v_mfma_f32_32x32x4bf16_1k {V(vS,32)}, {A(aKR+2*p,2)}, {V(vO+4,2)}, 0')
        for h in range(2): a(f'v_mfma_f32_32x32x16_bf16 {V(vS+16*h,16)}, {A(aKM+8*p+4*h,4)}, {V(vO,4)}, {V(vS+16*h,16)}')
        for i in range(16): a(f'v_max3_f32 v{T}, v{vS+2*i}, v{vS+2*i+1}, v{T}')
    a(f'v_mov_b32 v{T+1}, v{T}')
    a(f'v_permlane32_swap_b32 v{T+1}, v{T}')
    a(f'v_max_f32 v{T}, v{T}, v{T+1}')
    a(f'ds_write_b32 v{T+10}, v{T} offset:{L_ST}')
    a(f'v_add_u32 v{T+10}, 1024, v{T+10}')
    a('s_add_u32 s54, s54, 144')
    a('s_add_u32 s55, s55, 1')
    a.forcewait()
    a('s_cmp_lt_u32 s55, 8')
    a('s_cbranch_scc1 KF_FB_LOOP')
    a('s_barrier')
    a(f'v_lshlrev_b32 v{T+10}, 2, v{vL}')
    for t in range(8):
        for w in range(4): a(f'ds_read_b32 v{T+w}, v{T+10} offset:{L_ST+1024*t+256*w}')
        a(f'v_max3_f32 v{T}, v{T}, v{T+1}, v{T+2}')
        a(f'v_max_f32 v{T}, v{T}, v{T+3}')
        a(f'v_and_b32 v{T+1}, 0xffff0000, v{T}')
        a(f'v_sub_f32 v{T+2}, v{T}, v{T+1}')
        a(f'v_cvt_pk_bf16_f32 v{T+1}, -v{T+1}, -v{T+2}')
        a(f'v_accvgpr_write_b32 a{aQR+2*t+1}, v{T+1}')
    a(f's_mov_b32 s{sMODE}, 1')
    a.forcewait(); a.fence()
    a('s_barrier')
    a('s_branch KF_START')
    return a, dict(name='kf_kernel', nv=512, acc=256, lds=KF_LDS, grid=256, block=256)
```

```python
from mblib import *
import itertools
cnt = itertools.count()
def kern(staux="sc1", flagst="buffer_store_dword v9, off, s[16:19], s26 sc1", pollaux="sc1", prepoll=False, sleep=0, stride=7, nload=6, skew=0, onewave=False, direct=False, nst=3, nowait=False, apoll=False, percons=False):
    s = f"""
s_load_dwordx2 s[4:5], s[0:1], 0
s_load_dwordx2 s[16:17], s[0:1], 8
s_load_dword s40, s[0:1], 16
v_lshrrev_b32 v1, 6, v0
v_and_b32 v2, 63, v0
v_readfirstlane_b32 s20, v1
v_lshlrev_b32 v3, 4, v2
v_and_b32 v4, 7, v2
v_lshlrev_b32 v4, {stride}, v4
s_waitcnt lgkmcnt(0)
s_mov_b32 s18, 0x10000000
s_mov_b32 s19, 0x20000
s_lshl_b32 s21, s2, 2
s_add_u32 s21, s21, s20
s_mul_i32 s25, s21, 3072
s_add_u32 s25, s25, 0x100000
s_lshl_b32 s26, s21, {stride}
s_lshr_b32 s27, s2, 3
s_lshl_b32 s27, s27, 2
s_add_u32 s27, s27, s20
s_mul_i32 s28, s27, {8*3072}
s_add_u32 s28, s28, 0x100000
s_lshl_b32 s27, s27, {stride+3}
v_mov_b32 v9, s40
v_mov_b32 v12, s40
v_mov_b32 v13, s40
v_mov_b32 v14, s40
v_mov_b32 v15, s40
"""
    if prepoll: s += f"buffer_load_dword v10, v4, s[16:19], s27 offen {pollaux}\ns_waitcnt vmcnt(0)\n"
    s += f"""
s_memrealtime s[30:31]
s_waitcnt lgkmcnt(0)
s_add_u32 s30, s30, 1024
s_and_b32 s30, s30, 0xfffffc00
s_and_b32 s31, s2, 7
s_mul_i32 s31, s31, {skew}
s_add_u32 s32, s30, s31
L_w:
s_memrealtime s[34:35]
s_waitcnt lgkmcnt(0)
s_sub_u32 s34, s34, s32
s_cmp_lt_i32 s34, 0
s_cbranch_scc1 L_w
"""
    for i in range(nst): s += f"buffer_store_dwordx4 v[12:15], v3, s[16:19], s25 offen offset:{1024*i} {staux}\n"
    if direct:
        s += "s_memrealtime s[42:43]\ns_mov_b32 s3, 100000\nL_p:\ns_mov_b32 s29, s28\n"
        for i in range(nload): s += f"buffer_load_dwordx4 v[{16+4*i}:{19+4*i}], v3, s[16:19], s29 offen sc1\ns_add_u32 s29, s29, {3072 if nload <= 8 else 1024}\n"
        s += "s_sub_u32 s3, s3, 1\ns_waitcnt vmcnt(0)\ns_cbranch_scc1 L_ok\n"
        for i in range(1, nload): s += f"v_min_u32 v16, v16, v{16+4*i}\n"
        s += "v_cmp_ne_u32 vcc, s40, v16\ns_nop 1\ns_cbranch_vccnz L_p\nL_ok:\ns_memrealtime s[44:45]\ns_memrealtime s[48:49]\ns_memrealtime s[46:47]\n"
    else:
        s += "s_waitcnt vmcnt(0)\ns_memrealtime s[42:43]\ns_mov_b32 s3, 100000\n"
        if onewave: s += f"s_barrier\ns_cmp_lg_u32 s20, 0\ns_cbranch_scc1 L_ok\nv_lshlrev_b32 v4, 2, v4\n"
        POLL = f"buffer_load_dword v10, v4, s[16:19], s27 offen {pollaux}"
        if apoll: POLL = "v_mov_b32 v10, s40\ns_mov_b64 exec, 0xff\nv_mov_b32 v10, 0\nbuffer_atomic_or v10, v4, s[16:19], s27 offen sc0 sc1\ns_mov_b64 exec, -1"
        if percons:
            flagst = "s_mov_b64 exec, 0xff\ns_lshl_b32 s26, s26, 3\nbuffer_store_dword v9, v4, s[16:19], s26 offen sc1\ns_mov_b64 exec, -1\nv_lshlrev_b32 v4, 3, v4\ns_lshl_b32 s27, s27, 3\ns_and_b32 s33, s2, 7\ns_lshl_b32 s33, s33, 7\ns_add_u32 s27, s27, s33"
        s += f"""s_mov_b64 exec, 1
{flagst}
s_mov_b64 exec, -1
{f's_sleep {sleep}' if sleep else ''}
L_p:
{POLL}
s_sub_u32 s3, s3, 1
s_waitcnt vmcnt(0)
s_cbranch_scc1 L_ok
v_cmp_ne_u32 vcc, s40, v10
s_nop 1
s_cbranch_vccnz L_p
L_ok:
{'s_barrier' if onewave else ''}
s_memrealtime s[44:45]
"""
        for i in range(nload): s += f"buffer_load_dwordx4 v[{16+4*(i%8)}:{19+4*(i%8)}], v3, s[16:19], s28 offen sc1\ns_add_u32 s28, s28, 1024\n"
        s += f"s_waitcnt vmcnt({nload-2})\ns_memrealtime s[48:49]\ns_waitcnt vmcnt(0)\ns_memrealtime s[46:47]\n"
    s += f"""
s_waitcnt lgkmcnt(0)
s_sub_u32 s42, s42, s30
s_sub_u32 s44, s44, s30
s_sub_u32 s46, s46, s30
s_sub_u32 s48, s48, s30
s_lshl_b32 s21, s21, 5
v_mov_b32 v3, s21
v_mov_b32 v4, s42
v_mov_b32 v5, s44
v_mov_b32 v6, s48
v_mov_b32 v7, s46
global_store_dwordx4 v3, v[4:7], s[4:5]
s_nop 4
v_mov_b32 v4, s3
v_mov_b32 v5, s30
global_store_dwordx2 v3, v[4:5], s[4:5] offset:16
s_waitcnt vmcnt(0)
"""
    return s
gpu = os.path.exists('/dev/kfd')
if gpu:
    buf = DeviceBuffer(1 << 20); data = DeviceBuffer(1 << 24); flush = DeviceBuffer(512 << 20)
V = {"base": {}, "nload2": dict(nload=2), "nload18": dict(nload=18), "sleep8 first": dict(sleep=8), "sleep16 first": dict(sleep=16), "onewave": dict(onewave=True), "prepoll": dict(prepoll=True),
 "apoll": dict(apoll=True), "percons": dict(percons=True), "percons apoll": dict(percons=True, apoll=True),
 "skew": dict(skew=10), "skew apoll": dict(skew=10, apoll=True), "skew percons": dict(skew=10, percons=True), "skew onewave": dict(skew=10, onewave=True),
 "direct2": dict(direct=True, nload=2), "direct6": dict(direct=True, nload=6), "direct6 skew": dict(direct=True, nload=6, skew=10)}
nonce = 1000
for name, kw in V.items():
    k = build(kern(**kw), bx=256, nv=64, acc=64, tag=f"mb19_{next(cnt)}")
    if not gpu: continue
    for cold in (1, 2):
        r = []
        for rep in range(9):
            nonce += 1
            if cold == 1: memset(data, 0, 1 << 24); memset(flush, 1, 512 << 20); sync()
            if cold == 2: memset(flush, 1, 512 << 20); memset(data, 0, 1 << 24); sync()
            k.launch((256,1,1), (256,1,1), struct.pack("<4Q", buf.ptr, data.ptr, nonce, 0), 0); sync()
            o = buf.to_numpy(np.uint32, (1024, 8))
            if len(set(o[:, 5])) != 1: continue
            r.append([np.median(o[:, i]) / 100 for i in range(4)] + [o[:, i].max() / 100 for i in range(4)] + [np.median(100000 - o[:, 4])])
        r = np.median(np.array(r), axis=0)
        print(f"{name:18s} cold={cold} med ack {r[0]:.2f} seen {r[1]:.2f} first2 {r[2]:.2f} all {r[3]:.2f} | max ack {r[4]:.2f} seen {r[5]:.2f} first2 {r[6]:.2f} all {r[7]:.2f} polls {r[8]:.0f}", flush=True)
    k.unload()
```

```python
from mblib import *
import itertools
cnt = itertools.count()
NCH = 44
def kern(pre, dens, hops=()):
    s = """
s_load_dwordx2 s[4:5], s[0:1], 0
v_lshrrev_b32 v1, 6, v0
s_nop 1
v_readfirstlane_b32 s3, v1
s_getpc_b64 s[6:7]
PC0:
s_waitcnt lgkmcnt(0)
""" + pre + """
s_waitcnt vmcnt(0) lgkmcnt(0)
s_sleep 60
s_memtime s[98:99]
s_cmp_lg_u32 s3, 0
s_cbranch_scc1 NOHOP
s_mov_b64 exec, 0
""" + (f"s_branch H{hops[0]}\n" if hops else "") + """
HRET:
s_mov_b64 exec, -1
NOHOP:
s_memtime s[100:101]
s_sleep 20
s_barrier
s_branch BODY
.p2align 12
BODY:
"""
    for c in range(NCH):
        nxt = (f"H{hops[hops.index(c)+1]}" if hops.index(c) + 1 < len(hops) else "HRET") if c in hops else "HRET"
        s += f"H{c}:\ns_cbranch_execz {nxt}\ns_nop 0\ns_memtime s[{10+2*c}:{11+2*c}]\n"
        if dens == 4: s += "\n".join(f"v_exp_f32 v{8+i%16}, v{8+i%16}" for i in range(124)) + "\n"
        else: s += "\n".join(f"v_fma_f32 v{8+i%16}, v{8+i%16}, v2, v3" for i in range(62)) + "\n"
    s += "s_waitcnt lgkmcnt(0)\n"
    for c in range(NCH): s += f"v_writelane_b32 v4, s{10+2*c}, {c}\n"
    s += """
s_sub_u32 s100, s100, s98
v_writelane_b32 v4, s100, 63
s_lshl_b32 s8, s2, 10
v_lshl_add_u32 v5, v0, 2, s8
global_store_dword v5, v4, s[4:5]
s_waitcnt vmcnt(0)
"""
    return s
vt = "v_lshlrev_b32 v5, 7, v0\nv_min_u32 v5, %d, v5\nglobal_load_dword v6, v5, s[6:7]\n" % (NCH * 512 + 512)
sp = "".join(f"s_load_dword s8, s[6:7], {1024*i}\n" for i in range(NCH // 2))
gpu = os.path.exists('/dev/kfd')
big = build('\n'.join(['v_fma_f32 v1, v1, v1, v1'] * 15000), bx=256, nv=64, acc=64, tag='big')
if gpu: buf = DeviceBuffer(1 << 20); flush = DeviceBuffer(512 << 20)
H = lambda offs: [c for c in range(NCH) if c % 8 in offs]
for name, pre, dens, hops in (("nohop", vt, 8, []), ("hop0", vt, 8, H([0])), ("hop01", vt, 8, H([0, 1])), ("hop04", vt, 8, H([0, 4])), ("hopall", vt, 8, H(range(8))), ("hop01 cold", "", 8, H([0, 1])), ("hop1", vt, 8, H([1])), ("hop012", vt, 8, H([0, 1, 2]))):
    k = build(kern(pre, dens, hops), bx=256, nv=64, acc=64, tag=f"mb24_{next(cnt)}")
    if not gpu: continue
    for rep in range(2):
        big.launch((256,1,1), (256,1,1), pack_ptr_kernargs([buf.ptr]*4), 0); memset(flush, 1, 512 << 20); sync()
        k.launch((256,1,1), (256,1,1), pack_ptr_kernargs([buf.ptr]*4), 0); sync()
        o = buf.to_numpy(np.uint32, (1024, 64)).astype(np.int64)
        d = np.diff(o[:, :NCH], axis=1)
        print(name, 'hoptime', int(np.median(o[::4, 63])), 'excess:', ' '.join(str(int(x)) for x in np.mean(d, axis=0) - np.min(d)), flush=True)
    k.unload()
```
